```python
import torch

def _softmax(x, axis=-1):
    return torch.softmax(x, dim=axis)

def _gelu(x):
    return torch.nn.functional.gelu(x, approximate='tanh')

def _silu(x):
    return torch.nn.functional.silu(x)

def _sigmoid(x):
    return torch.sigmoid(x)

def _layernorm(x, axis=-1, eps=1e-05):
    m = x.mean(dim=axis, keepdim=True)
    v = x.var(dim=axis, keepdim=True, unbiased=False)
    return (x - m) / torch.sqrt(v + eps)

def _scatter_add(tgt, idx, src, axis=0):
    return tgt.clone().index_add_(axis, idx, src)

def _segment_sum(src, seg, n):
    out = torch.zeros((n,) + src.shape[1:], dtype=src.dtype)
    return out.index_add_(0, seg, src)

def _pad(x, pw):
    flat = tuple((v for pair in reversed(pw) for v in pair))
    return torch.nn.functional.pad(x, flat)
kernel_name = 'sequential_preLN__memory_aug_recurrent_mem_tr__dense_activation_squared_relu__prompt'

def setup_inputs():

    _w = lambda a: (lambda t: t.to(torch.bfloat16) if t.is_floating_point() else t)(torch.as_tensor(a))

    def _A_setup():
        B, S, Dm = (1, 2048, 448)
        H, Dh = (16, 256)
        M, seg = (8, 32)
        seg = min(seg, S)
        S = S // seg * seg
        return {'x': _w((lambda *s: torch.randn(*s, dtype=torch.bfloat16) * 0.05)(B, S, Dm)), 'mem0': _w((lambda *s: torch.randn(*s, dtype=torch.bfloat16) * 0.2)(B, M, Dm)), 'Wq': _w((lambda *s: torch.randn(*s, dtype=torch.bfloat16) * 1.6)(Dm, H, Dh) * Dm ** (-0.5)), 'Wk': _w((lambda *s: torch.randn(*s, dtype=torch.bfloat16) * 1.6)(Dm, H, Dh) * Dm ** (-0.5)), 'Wv': _w((lambda *s: torch.randn(*s, dtype=torch.bfloat16) * 0.2)(Dm, H, Dh) * Dm ** (-0.5)), 'Wo': _w((lambda *s: torch.randn(*s, dtype=torch.bfloat16) * 0.2)(H, Dh, Dm) * (H * Dh) ** (-0.5)), 'seg_len': seg}
    _A_in = _A_setup()

    def _B_setup():
        B, S, D, F = (1, 2048, 448, 1792)
        return {'x': _w((lambda *s: torch.randn(*s, dtype=torch.bfloat16) * 0.05)(B, S, D)), 'w1': _w((lambda *s: torch.randn(*s, dtype=torch.bfloat16) * 0.05)(D, F)), 'b1': _w((lambda *s: torch.randn(*s, dtype=torch.bfloat16) * 0.2)(F)), 'w2': _w((lambda *s: torch.randn(*s, dtype=torch.bfloat16) * 0.05)(F, D)), 'b2': _w((lambda *s: torch.randn(*s, dtype=torch.bfloat16) * 0.8)(D))}
    _B_in = _B_setup()
    return {'A_x': _A_in['x'], 'A_mem0': _A_in['mem0'], 'A_Wq': _A_in['Wq'], 'A_Wk': _A_in['Wk'], 'A_Wv': _A_in['Wv'], 'A_Wo': _A_in['Wo'], 'A_seg_len': _A_in['seg_len'], 'B_x': _B_in['x'], 'B_w1': _B_in['w1'], 'B_b1': _B_in['b1'], 'B_w2': _B_in['w2'], 'B_b2': _B_in['b2']}

def reference(A_x, A_mem0, A_Wq, A_Wk, A_Wv, A_Wo, A_seg_len, B_x, B_w1, B_b1, B_w2, B_b2):

    def _A_ref(x, mem0, Wq, Wk, Wv, Wo, seg_len):
        B, S, Dm = x.shape
        H, Dh = (Wq.shape[1], Wq.shape[2])
        M = mem0.shape[1]
        scale = Dh ** (-0.5)
        n_seg = S // seg_len
        L = M + seg_len
        idx = torch.arange(L)
        mask = (idx[:, None] < M) | (idx[:, None] >= idx[None, :])
        mem = mem0
        outs = []
        for s in range(n_seg):
            xs = x[:, s * seg_len:(s + 1) * seg_len, :].clone()
            h = torch.concatenate([mem, xs], axis=1)
            q = torch.einsum('btd,dhe->bhte', h, Wq)
            k = torch.einsum('btd,dhe->bhte', h, Wk)
            v = torch.einsum('btd,dhe->bhte', h, Wv)
            scores = torch.einsum('bhqe,bhke->bhqk', q, k) * scale
            scores = torch.where(mask[None, None], scores, -1000000000.0)
            p = _softmax(scores, axis=-1)
            o = torch.einsum('bhqk,bhke->bhqe', p, v)
            o = torch.einsum('bhte,hed->btd', o, Wo)
            mem = o[:, :M, :].clone()
            outs.append(o[:, M:, :])
        return torch.concatenate(outs, axis=1)

    def _B_ref(x, w1, b1, w2, b2):
        h = torch.einsum('bsd,df->bsf', x, w1) + b1
        zero = torch.zeros_like(h)
        r = torch.where(h > zero, h, zero)
        h = r * r
        out = torch.einsum('bsf,fd->bsd', h, w2) + b2
        return out
    x = A_x
    h = x + _A_ref(_layernorm(x, axis=-1), A_mem0, A_Wq, A_Wk, A_Wv, A_Wo, A_seg_len)
    h2 = h + _B_ref(_layernorm(h, axis=-1), B_w1, B_b1, B_w2, B_b2)
    return h2
```

```python
from emit import Asm
from layout import *

SRD = "s[8:11]"
S_ROLE=12; S_W=13; S_STEP=14; S_MEMOFF=15; S_POFF=16; S_PF=17; S_T0=18; S_TMO=19; S_T1=20; S_T2=21; S_T3=22; S_POFF2=23; S_UOFF=24; S_TRC=25
S_SLOT=26; S_J=27; S_DLT=28; S_PF2=29; S_SLOT2=30
S_ST=40

def wreg(idx):
    base = idx*8
    if base < 256: return f"a[{base}:{base+7}]", 'a', base
    b = 120 + (base-256)
    return f"v[{b}:{b+7}]", 'v', b

def load_weights(a, nblk, v_lane16, s_off):
    for idx in range(nblk):
        _, k, b = wreg(idx)
        o = (idx % 2) * 2048
        a(f"buffer_load_dwordx4 {k}[{b}:{b+3}], v{v_lane16}, {SRD}, s{s_off} offen offset:{o}")
        a(f"buffer_load_dwordx4 {k}[{b+4}:{b+7}], v{v_lane16}, {SRD}, s{s_off} offen offset:{o+1024}")
        if idx % 2 == 1: a(f"s_add_u32 s{s_off}, s{s_off}, 4096")

def stamp(a, trace, n):
    if trace:
        a(f"s_memtime s[{S_ST+2*n}:{S_ST+2*n+1}]")
        a("s_waitcnt lgkmcnt(0)")

def dump_stamps(a, trace, nst, vt):
    if not trace: return
    for n in list(range(nst)) + [6, 7]:
        a(f"v_mov_b32 v{vt}, s{S_ST+2*n}")
        a(f"v_mov_b32 v{vt+1}, {n*4}")
        a(f"buffer_store_dword v{vt}, v{vt+1}, {SRD}, s{S_TRC} offen")
    a(f"s_add_u32 s{S_TRC}, s{S_TRC}, 64")
    a(f"s_mov_b32 s{S_ST+12}, 0")
    a(f"s_mov_b32 s{S_ST+14}, 0")

def total_stamp(a, which, vt):
    a(f"s_memtime s[{S_ST+14}:{S_ST+15}]")
    a("s_waitcnt lgkmcnt(0)")
    a(f"s_lshl_b32 s{S_T0}, s{S_ROLE}, 12")
    a(f"s_add_u32 s{S_T0}, s{S_T0}, {WS_TRACE + 63*64 + 32 + 4*which}")
    a(f"v_mov_b32 v{vt}, s{S_ST+14}")
    a(f"v_mov_b32 v{vt+1}, 0")
    a(f"buffer_store_dword v{vt}, v{vt+1}, {SRD}, s{S_T0} offen")

def poll_mem(a, lbl, vd, v_o1, v_o2, vt):
    a(f"{lbl}_POLL:")
    a(f"buffer_load_dwordx4 v[{vd}:{vd+3}], v{v_o1}, {SRD}, s{S_MEMOFF} offen sc1")
    a(f"buffer_load_dwordx4 v[{vd+4}:{vd+7}], v{v_o2}, {SRD}, s{S_MEMOFF} offen sc1")
    a("s_waitcnt vmcnt(0)")
    a(f"v_max3_u32 v{vt}, v{vd}, v{vd+1}, v{vd+2}")
    a(f"v_max3_u32 v{vt+1}, v{vd+3}, v{vd+4}, v{vd+5}")
    a(f"v_max3_u32 v{vt}, v{vt}, v{vd+6}, v{vd+7}")
    a(f"v_max_u32 v{vt}, v{vt}, v{vt+1}")
    a(f"v_cmp_eq_u32 vcc, -1, v{vt}")
    a(f"s_cbranch_vccz {lbl}_GOT")
    a(f"s_add_u32 s{S_ST+12}, s{S_ST+12}, 1")
    a(f"s_sub_u32 s{S_TMO}, s{S_TMO}, 1")
    a(f"s_cbranch_scc0 {lbl}_POLL")
    a(f"s_mov_b32 s{S_TMO}, 0")
    a(f"{lbl}_GOT:")
    a(f"ds_write_b128 v{v_o1}, v[{vd}:{vd+3}]")
    a(f"ds_write_b128 v{v_o2}, v[{vd+4}:{vd+7}]")

def common_prologue(a):
    a(f"""
s_load_dwordx2 s[4:5], s[0:1], {KA_WS}
s_load_dwordx2 s[6:7], s[0:1], {KA_DBG}
v_lshrrev_b32 v1, 6, v0
s_nop 0
v_readfirstlane_b32 s{S_W}, v1
v_and_b32 v1, 63, v0
s_waitcnt lgkmcnt(0)
s_mov_b32 s8, s4
s_and_b32 s9, s5, 0xffff
s_mov_b32 s10, 0x10000000
s_mov_b32 s11, 0x00020000
""")

def election(a, fail_label):
    a(f"""
s_cmp_lg_u32 s{S_W}, 0
s_cbranch_scc1 EL_WAIT
s_getreg_b32 s{S_T0}, hwreg(HW_REG_XCC_ID)
s_and_b32 s{S_T0}, s{S_T0}, 7
s_lshl_b32 s{S_T1}, s{S_T0}, 2
v_mov_b32 v2, s{S_T1}
v_mov_b32 v3, 1
v_mov_b32 v6, 32
s_mov_b64 s[26:27], exec
s_mov_b64 exec, 1
global_atomic_add v4, v2, v3, s[6:7] sc0
s_waitcnt vmcnt(0)
v_readfirstlane_b32 s{S_ROLE}, v4
s_add_u32 s{S_T1}, s{S_T0}, 1
s_cmp_lg_u32 s{S_ROLE}, {NEED-1}
s_cbranch_scc1 EL_NOCAS
v_mov_b32 v4, s{S_T1}
v_mov_b32 v5, 0
global_atomic_cmpswap v6, v[4:5], s[6:7]
s_waitcnt vmcnt(0)
EL_NOCAS:
s_cmp_ge_u32 s{S_ROLE}, {NEED+2}
s_cbranch_scc1 EL_LOSE
s_mov_b32 s{S_T2}, 0x400000
EL_POLL:
global_load_dword v4, v6, s[6:7] sc1
s_waitcnt vmcnt(0)
v_readfirstlane_b32 s{S_T3}, v4
s_cmp_lg_u32 s{S_T3}, 0
s_cbranch_scc1 EL_DONE
s_sub_u32 s{S_T2}, s{S_T2}, 1
s_cbranch_scc0 EL_POLL
EL_DONE:
s_cmp_eq_u32 s{S_T3}, s{S_T1}
s_cbranch_scc1 EL_PUB
EL_LOSE:
s_mov_b32 s{S_ROLE}, 255
EL_PUB:
v_mov_b32 v4, s{S_ROLE}
v_mov_b32 v5, 0
ds_write_b32 v5, v4
s_waitcnt lgkmcnt(0)
s_mov_b64 exec, s[26:27]
EL_WAIT:
s_barrier
v_mov_b32 v5, 0
ds_read_b32 v4, v5
s_waitcnt lgkmcnt(0)
v_readfirstlane_b32 s{S_ROLE}, v4
s_barrier
s_cmp_eq_u32 s{S_ROLE}, 255
s_cbranch_scc1 {fail_label}
""")

def dma_list(V_L16, n=8):
    groups = []
    for k in range(n):
        g = []
        if k == 0: g.append(f"s_mov_b32 m0, s{S_SLOT}")
        if k == 4:
            g.append(f"s_add_u32 m0, s{S_SLOT}, 4096")
        src = S_PF if k < 4 else S_PF2
        g.append(f"buffer_load_dwordx4 v{V_L16}, {SRD}, s{src} offen offset:{(k%4)*1024} lds")
        groups.append(g)
    return groups

def role_A(a, nsteps, trace, P):
    L_MEM=0; L_TR=8192; L_SP=16384; L_XK=32768
    V_IDX=2; V_O1=3; V_O2=4; V_L16=5; V_TRW=6; V_TRR=7; V_MK=8; V_XK=9; V_SPW=10; V_SPR=11; V_PS=12; V_MASK=13
    V_SEL=14
    Mr=16; ACC=44; TP=72; TT=74; KY=82; SA=106; T=118
    PD=KY
    a("ROLE_A:")
    t0,t1,t2,t3,t4,t5 = ACC,ACC+1,ACC+2,ACC+3,ACC+4,ACC+5
    a(f"""
v_lshlrev_b32 v{V_L16}, 4, v1
v_lshlrev_b32 v{V_O1}, 4, v0
v_add_u32 v{V_O2}, 4096, v{V_O1}
v_cmp_gt_u32 vcc, 192, v0
v_cndmask_b32 v{V_O2}, v{V_O1}, v{V_O2}, vcc
v_and_b32 v{t0}, 15, v1
v_lshrrev_b32 v{t1}, 4, v1
v_mov_b32 v{V_IDX}, 0x44444444
v_mov_b32 v{t2}, 0xeeeeeeee
v_cmp_lt_u32 vcc, 7, v{t0}
v_cndmask_b32 v{V_IDX}, v{V_IDX}, v{t2}, vcc
s_lshl_b32 s{S_T0}, s{S_W}, 11
s_add_u32 s{S_T0}, s{S_T0}, {L_TR}
v_lshrrev_b32 v{t2}, 1, v{t1}
v_lshlrev_b32 v{t2}, 8, v{t2}
v_lshl_add_u32 v{t2}, v{t0}, 4, v{t2}
v_and_b32 v{t3}, 1, v{t1}
v_lshl_add_u32 v{t2}, v{t3}, 3, v{t2}
v_add_u32 v{V_TRW}, s{S_T0}, v{t2}
v_lshrrev_b32 v{t2}, 2, v{t0}
v_lshl_add_u32 v{t2}, v{t1}, 2, v{t2}
v_lshlrev_b32 v{t2}, 4, v{t2}
v_and_b32 v{t4}, 1, v1
v_lshl_add_u32 v{t2}, v{t4}, 3, v{t2}
v_add_u32 v{V_TRR}, s{S_T0}, v{t2}
s_mul_i32 s{S_T1}, s{S_W}, {14*128}
v_lshrrev_b32 v{t2}, 1, v{t1}
v_lshlrev_b32 v{t2}, 7, v{t2}
v_and_b32 v{t4}, 7, v1
v_lshl_add_u32 v{t2}, v{t4}, 4, v{t2}
v_lshl_add_u32 v{t2}, v{t3}, 3, v{t2}
v_add_u32 v{V_MK}, s{S_T1}, v{t2}
s_lshl_b32 s{S_T0}, s{S_W}, 13
s_add_u32 s{S_SLOT}, s{S_T0}, {L_XK}
v_add_u32 v{V_XK}, s{S_SLOT}, v{V_L16}
s_add_u32 s{S_PF}, s{S_T0}, {WS_XK}
s_add_u32 s{S_PF2}, s{S_PF}, 4096
""")
    a(f"""
s_mul_i32 s{S_T1}, s{S_W}, 1536
s_add_u32 s{S_T1}, s{S_T1}, {L_SP}
v_lshlrev_b32 v{t2}, 4, v{t4}
v_lshl_add_u32 v{t2}, v{t1}, 7, v{t2}
v_add_u32 v{V_SPW}, s{S_T1}, v{t2}
""")
    a(f"""
v_and_b32 v{t5}, 31, v1
v_lshrrev_b32 v{t2}, 5, v1
v_cmp_gt_u32 vcc, 20, v{t5}
v_mov_b32 v{V_MASK}, 0
v_cndmask_b32 v{V_MASK}, v{V_MASK}, 1.0, vcc
v_cndmask_b32 v{t3}, 0, v{t5}, vcc
s_lshl_b32 s{S_T1}, s{S_W}, 1
v_add_u32 v{t2}, s{S_T1}, v{t2}
v_add_u32 v{t1}, 4, v{t3}
v_cmp_lt_u32 vcc, 3, v{t3}
v_cndmask_b32 v{t3}, v{t3}, v{t1}, vcc
v_lshrrev_b32 v{t0}, 1, v{t3}
v_lshlrev_b32 v{t0}, 7, v{t0}
v_and_b32 v{t1}, 1, v{t3}
v_lshl_add_u32 v{t0}, v{t1}, 3, v{t0}
v_lshl_add_u32 v{t0}, v{t2}, 4, v{t0}
v_add_u32 v{V_SPR}, {L_SP}, v{t0}
""")
    a(f"""
s_lshr_b32 s{S_T0}, s{S_ROLE}, 2
s_mul_i32 s{S_T0}, s{S_T0}, 2560
s_and_b32 s{S_T1}, s{S_ROLE}, 3
s_lshl_b32 s{S_T2}, s{S_T1}, 9
s_add_u32 s{S_T2}, s{S_T2}, s{S_T0}
s_and_b32 s{S_T3}, s{S_T1}, 1
s_lshl_b32 s{S_T3}, s{S_T3}, 8
s_lshr_b32 s{S_T1}, s{S_T1}, 1
s_lshl_b32 s{S_T1}, s{S_T1}, 3
s_add_u32 s{S_T3}, s{S_T3}, s{S_T1}
s_add_u32 s{S_T3}, s{S_T3}, s{S_T0}
s_add_u32 s{S_T3}, s{S_T3}, 2048
v_subrev_u32 v{t0}, 4, v{t5}
v_and_b32 v{t1}, 7, v{t0}
v_lshrrev_b32 v{t1}, 1, v{t1}
v_lshlrev_b32 v{t1}, 7, v{t1}
v_lshrrev_b32 v{t3}, 3, v{t0}
v_lshl_add_u32 v{t1}, v{t3}, 3, v{t1}
v_and_b32 v{t0}, 1, v{t0}
v_lshl_add_u32 v{t0}, v{t0}, 2, v{t1}
v_add_u32 v{t0}, s{S_T2}, v{t0}
v_lshrrev_b32 v{t1}, 1, v{t5}
v_lshlrev_b32 v{t1}, 7, v{t1}
v_and_b32 v{t3}, 1, v{t5}
v_lshl_add_u32 v{t1}, v{t3}, 2, v{t1}
v_add_u32 v{t1}, s{S_T3}, v{t1}
v_cmp_gt_u32 vcc, 4, v{t5}
v_cndmask_b32 v{t0}, v{t0}, v{t1}, vcc
v_lshl_add_u32 v{t0}, v{t2}, 4, v{t0}
v_mov_b32 v{t1}, 0x7ffffff0
v_cmp_gt_u32 vcc, 20, v{t5}
v_cndmask_b32 v{V_PS}, v{t1}, v{t0}, vcc
""")
    a(f"""
v_and_b32 v{t0}, 7, v1
v_lshrrev_b32 v{t1}, 4, v1
v_and_b32 v{t1}, 1, v{t1}
v_lshlrev_b32 v{t1}, 2, v{t1}
v_sub_u32 v{t0}, v{t0}, v{t1}
v_mov_b32 v{t2}, 0x3f80
v_mov_b32 v{t3}, 0x3f800000
v_mov_b32 v{V_SEL}, 0
v_mov_b32 v{V_SEL+1}, 0
v_cmp_eq_u32 vcc, 0, v{t0}
v_cndmask_b32 v{V_SEL}, v{V_SEL}, v{t2}, vcc
v_cmp_eq_u32 vcc, 1, v{t0}
v_cndmask_b32 v{V_SEL}, v{V_SEL}, v{t3}, vcc
v_cmp_eq_u32 vcc, 2, v{t0}
v_cndmask_b32 v{V_SEL+1}, v{V_SEL+1}, v{t2}, vcc
v_cmp_eq_u32 vcc, 3, v{t0}
v_cndmask_b32 v{V_SEL+1}, v{V_SEL+1}, v{t3}, vcc
s_lshl_b32 s{S_T0}, s{S_ROLE}, 2
s_add_u32 s{S_T0}, s{S_T0}, s{S_W}
s_mul_i32 s{S_T0}, s{S_T0}, {49*2048}
s_add_u32 s{S_T0}, s{S_T0}, {WS_AW}
""")
    load_weights(a, 49, V_L16, S_T0)
    a(f"""
s_mov_b32 s{S_STEP}, 0
s_mov_b32 s{S_MEMOFF}, {WS_MEMS}
s_mov_b32 s{S_POFF}, {WS_PBUF}
s_mov_b32 s{S_TMO}, 0x40000
s_lshl_b32 s{S_TRC}, s{S_ROLE}, 12
s_add_u32 s{S_TRC}, s{S_TRC}, {WS_TRACE}
""")
    XKS = 0 if P.get('hot') else XK_STRIDE
    def dma_adv():
        return [f"s_add_u32 s{S_PF}, s{S_PF}, {XKS}", f"s_add_u32 s{S_PF2}, s{S_PF2}, {XKS}", f"s_xor_b32 s{S_SLOT}, s{S_SLOT}, {L_XK ^ (L_XK+32768)}"]
    for g in dma_list(V_L16):
        for x in g: a(x)
    for x in dma_adv(): a(x)
    a("s_waitcnt vmcnt(0)")
    total_stamp(a, 0, T)
    for w in range(1, 4):
        a(f"s_cmp_eq_u32 s{S_W}, {w}")
        a(f"s_cbranch_scc1 A{w}_LOOP")
    for w in range(4):
        L = f"A{w}"
        tr = trace and w == 0
        a(f"{L}_LOOP:")
        stamp(a, tr, 0)
        for r in range(28): a(f"v_mov_b32 v{ACC+r}, 0")
        for r in range(12): a(f"v_mov_b32 v{SA+r}, 0")
        if P.get('asleep',0): a(f"s_sleep {P['asleep']}")
        if not P.get('bench'): poll_mem(a, L, PD, V_O1, V_O2, T)
        a("s_waitcnt lgkmcnt(0)")
        a("s_barrier")
        stamp(a, tr, 1)
        for ks in range(7):
            a(f"ds_read_b128 v[{Mr+4*ks}:{Mr+4*ks+3}], v{V_L16} offset:{L_MEM+ks*1024}")
        def acc(t): return ACC + 4*t
        def smf(t, ks):
            wr, _, _ = wreg(t*7+ks)
            return f"v_smfmac_f32_16x16x64_bf16 v[{acc(t)}:{acc(t)+3}], v[{Mr+4*ks}:{Mr+4*ks+3}], {wr}, v{V_IDX}"
        def keys_reads(p, buf):
            k = KY + buf*12
            out = []
            if p < 3:
                out.append(f"ds_read_b64 v[{k}:{k+1}], v{V_MK} offset:{(2*p)*256}")
                out.append(f"ds_read_b64 v[{k+2}:{k+3}], v{V_MK} offset:{(2*p+1)*256}")
                out.append(f"ds_read_b128 v[{k+4}:{k+7}], v{V_XK} offset:{p*1024}")
                out.append(f"ds_read_b128 v[{k+8}:{k+11}], v{V_XK} offset:{4096+p*1024}")
            else:
                out.append(f"ds_read_b64 v[{k}:{k+1}], v{V_MK} offset:{6*256}")
                out.append(f"ds_read_b64 v[{k+4}:{k+5}], v{V_XK} offset:{3*1024}")
                out.append(f"ds_read_b64 v[{k+8}:{k+9}], v{V_XK} offset:{4096+3*1024}")
            return out
        def pair_ops(p, buf):
            xa, xb = acc(2*p), acc(2*p+1)
            tt = TT + buf*4
            out = []
            for r in range(4): out.append(f"v_permlane32_swap_b32 v{xa+r}, v{xb+r}")
            for r in range(4): out.append(f"v_add_f32 v{xa+r}, v{xa+r}, v{xb+r}")
            out.append(f"v_cvt_pk_bf16_f32 v{TP}, v{xa}, v{xa+1}")
            out.append(f"v_cvt_pk_bf16_f32 v{TP+1}, v{xa+2}, v{xa+3}")
            out.append(f"ds_write_b64 v{V_TRW}, v[{TP}:{TP+1}] offset:{p*512}")
            out.append(f"ds_read_b64_tr_b16 v[{tt}:{tt+1}], v{V_TRR} offset:{(2*p)*256}")
            out.append(f"ds_read_b64_tr_b16 v[{tt+2}:{tt+3}], v{V_TRR} offset:{(2*p+1)*256}")
            return out
        def s_mfmas(p, buf):
            k = KY + buf*12; tt = TT + buf*4
            out = []
            for kt in range(3):
                if p < 3: out.append(f"v_mfma_f32_16x16x32_bf16 v[{SA+4*kt}:{SA+4*kt+3}], v[{k+4*kt}:{k+4*kt+3}], v[{tt}:{tt+3}], v[{SA+4*kt}:{SA+4*kt+3}]")
                else: out.append(f"v_mfma_f32_16x16x16_bf16 v[{SA+4*kt}:{SA+4*kt+3}], v[{k+4*kt}:{k+4*kt+1}], v[{tt}:{tt+1}], v[{SA+4*kt}:{SA+4*kt+3}]")
            return out
        side = {i: [] for i in range(49)}
        def put(slot, lst, per):
            lst = list(lst)
            while lst:
                side[slot] += lst[:per]; lst = lst[per:]; slot += 1
            return slot
        for p in range(3):
            b = 14*p + 14
            buf = p % 2
            put(b-4, keys_reads(p, buf), 1)
            e = put(b+2, pair_ops(p, buf), 2 if p < 2 else 3)
            if p < 2:
                side[b+13] += ["s_waitcnt lgkmcnt(0)"] + s_mfmas(p, buf)
        put(42, keys_reads(3, 1), 1)
        if not P.get('nodma'):
            for k, g in enumerate(dma_list(V_L16)):
                side[1 + (w % 2) + 2*k if k < 4 else 17 + w%2 + 2*(k-4)] += g
        side[27] += dma_adv()
        put(30, [f"v_mov_b32 v{acc(0)+r}, 0" for r in range(4)], 1)
        for t in range(7):
            for ks in range(7):
                sl = t*7+ks
                if t == 0: a(f"s_waitcnt lgkmcnt({6-ks})")
                a(smf(t, ks))
                if not P.get('noside'):
                    for x in side[sl]: a(x)
        if P.get('midstamp'): stamp(a, tr, 5)
        x6 = acc(6); z = acc(0)
        a(f"v_cvt_pk_bf16_f32 v{TP}, v{x6}, v{x6+1}")
        a(f"v_cvt_pk_bf16_f32 v{TP+1}, v{x6+2}, v{x6+3}")
        a(f"v_mfma_f32_16x16x16_bf16 v[{z}:{z+3}], v[{TP}:{TP+1}], v[{V_SEL}:{V_SEL+1}], v[{z}:{z+3}]")
        a("s_waitcnt lgkmcnt(0)")
        for x in s_mfmas(2, 0): a(x)
        a(f"v_cvt_pk_bf16_f32 v{TT+4}, v{z}, v{z+1}")
        a(f"v_cvt_pk_bf16_f32 v{TT+5}, v{z+2}, v{z+3}")
        for x in s_mfmas(3, 1): a(x)
        stamp(a, tr, 2)
        a(f"v_xor_b32 v{V_XK}, {L_XK ^ (L_XK+32768)}, v{V_XK}")
        for kt in range(3):
            a(f"ds_write_b128 v{V_SPW}, v[{SA+4*kt}:{SA+4*kt+3}] offset:{kt*512}")
        a("s_waitcnt lgkmcnt(0)")
        a("s_barrier")
        stamp(a, tr, 3)
        X = Mr
        for w2 in range(4):
            a(f"ds_read_b64 v[{X+2*w2}:{X+2*w2+1}], v{V_SPR} offset:{w2*1536}")
        a("s_waitcnt lgkmcnt(2)")
        a(f"v_pk_add_f32 v[{X}:{X+1}], v[{X}:{X+1}], v[{X+2}:{X+3}]")
        a("s_waitcnt lgkmcnt(0)")
        a(f"v_pk_add_f32 v[{X+4}:{X+5}], v[{X+4}:{X+5}], v[{X+6}:{X+7}]")
        a(f"v_pk_add_f32 v[{X}:{X+1}], v[{X}:{X+1}], v[{X+4}:{X+5}]")
        m = X+8; u = X+9
        def red(op, r):
            a(f"{op}_dpp v{r}, v{r}, v{r} quad_perm:[1,0,3,2] row_mask:0xf bank_mask:0xf")
            a(f"{op}_dpp v{r}, v{r}, v{r} quad_perm:[2,3,0,1] row_mask:0xf bank_mask:0xf")
            a(f"{op}_dpp v{r}, v{r}, v{r} row_half_mirror row_mask:0xf bank_mask:0xf")
            a(f"{op}_dpp v{r}, v{r}, v{r} row_mirror row_mask:0xf bank_mask:0xf")
            a(f"v_mov_b32 v{u}, v{r}")
            a(f"v_permlane16_swap_b32 v{r}, v{u}")
            a(f"{op} v{r}, v{r}, v{u}")
        a(f"v_max_f32 v{m}, v{X}, v{X+1}")
        red("v_max_f32", m)
        a(f"v_sub_f32 v{X}, v{X}, v{m}")
        a(f"v_sub_f32 v{X+1}, v{X+1}, v{m}")
        a(f"v_exp_f32 v{X}, v{X}")
        a(f"v_exp_f32 v{X+1}, v{X+1}")
        sreg = X+10
        a(f"v_add_f32 v{sreg}, v{X}, v{X+1}")
        a(f"v_mul_f32 v{sreg}, v{sreg}, v{V_MASK}")
        red("v_add_f32", sreg)
        a(f"v_rcp_f32 v{sreg}, v{sreg}")
        a(f"v_mul_f32 v{X}, v{X}, v{sreg}")
        a(f"v_mul_f32 v{X+1}, v{X+1}, v{sreg}")
        a(f"v_cvt_pk_bf16_f32 v{X}, v{X}, v{X+1}")
        a(f"buffer_store_dword v{X}, v{V_PS}, {SRD}, s{S_POFF} offen")
        stamp(a, tr, 4)
        dump_stamps(a, tr, 6, T)
        a(f"""
s_add_u32 s{S_MEMOFF}, s{S_MEMOFF}, {MEMS_STRIDE}
s_add_u32 s{S_POFF}, s{S_POFF}, {PBUF_STRIDE}
s_add_u32 s{S_STEP}, s{S_STEP}, 1
s_cmp_lt_u32 s{S_STEP}, {nsteps}
s_cbranch_scc1 {L}_LOOP
""")
        if w == 0: total_stamp(a, 1, T)
        a("s_waitcnt vmcnt(0)")
        a("s_endpgm")

def role_C(a, nsteps, trace, P):
    L_MEM=0; L_RED=8192; L_W7=16384; L_DT=73728
    V_IDX=2; V_O1=3; V_O2=4; V_L16=5; V_W7=6; V_DT=7; V_PO=8; V_RW=9; V_RR=10; V_MS=11; V_PO2=12
    Mr=16; ACC=48; UA=80; W7=88; PD=104; T=112
    a("ROLE_C:")
    a(f"s_sub_u32 s{S_J}, s{S_ROLE}, {NA}")
    a(f"""
v_lshlrev_b32 v{V_L16}, 4, v1
v_lshlrev_b32 v{V_O1}, 4, v0
v_add_u32 v{V_O2}, 4096, v{V_O1}
v_cmp_gt_u32 vcc, 192, v0
v_cndmask_b32 v{V_O2}, v{V_O1}, v{V_O2}, vcc
v_and_b32 v{T}, 15, v1
v_lshrrev_b32 v{T+1}, 4, v1
v_mov_b32 v{V_IDX}, 0x44444444
v_mov_b32 v{T+2}, 0xeeeeeeee
v_cmp_lt_u32 vcc, 7, v{T}
v_cndmask_b32 v{V_IDX}, v{V_IDX}, v{T+2}, vcc
s_mul_i32 s{S_T0}, s{S_W}, 14336
s_add_u32 s{S_T0}, s{S_T0}, {L_W7}
v_add_u32 v{V_W7}, s{S_T0}, v{V_L16}
s_lshl_b32 s{S_T1}, s{S_W}, 13
s_add_u32 s{S_SLOT}, s{S_T1}, {L_DT}
v_add_u32 v{V_DT}, s{S_SLOT}, v{V_L16}
v_and_b32 v{T+2}, 7, v1
v_lshlrev_b32 v{T+3}, 7, v{T+1}
v_lshl_add_u32 v{V_PO2}, v{T+2}, 4, v{T+3}
v_lshrrev_b32 v{T+3}, 3, v{T}
v_lshl_add_u32 v{V_PO}, v{T+3}, 9, v{V_PO2}
s_lshl_b32 s{S_T0}, s{S_W}, 11
s_add_u32 s{S_T0}, s{S_T0}, {L_RED}
v_add_u32 v{V_RW}, s{S_T0}, v{V_L16}
v_lshlrev_b32 v{T+4}, 10, v{T+3}
v_lshl_add_u32 v{T+4}, v{T+1}, 8, v{T+4}
v_lshl_add_u32 v{T+4}, v{T+2}, 4, v{T+4}
v_add_u32 v{V_RR}, {L_RED}, v{T+4}
v_lshrrev_b32 v{T+4}, 1, v{T+1}
v_lshl_add_u32 v{T+4}, v{T+3}, 1, v{T+4}
v_lshlrev_b32 v{T+4}, 7, v{T+4}
v_lshl_add_u32 v{T+4}, v{T+2}, 4, v{T+4}
v_and_b32 v{T+5}, 1, v{T+1}
v_lshl_add_u32 v{V_MS}, v{T+5}, 3, v{T+4}
s_lshl_b32 s{S_T0}, s{S_J}, 2
s_add_u32 s{S_T0}, s{S_T0}, s{S_W}
s_mul_i32 s{S_T0}, s{S_T0}, {56*2048}
s_add_u32 s{S_T0}, s{S_T0}, {WS_CW}
s_add_u32 s{S_T1}, s{S_T0}, {49*2048}
""")
    load_weights(a, 49, V_L16, S_T0)
    a(f"s_mul_i32 s{S_T2}, s{S_W}, 14336")
    a(f"s_add_u32 s{S_T2}, s{S_T2}, {L_W7}")
    for k in range(14):
        if k % 4 == 0:
            a(f"s_add_u32 m0, s{S_T2}, {k*1024}")
            a(f"s_add_u32 s{S_T3}, s{S_T1}, {k*1024}")
        a(f"buffer_load_dwordx4 v{V_L16}, {SRD}, s{S_T3} offen offset:{(k%4)*1024} lds")
    a(f"""
s_mov_b32 s{S_STEP}, 0
s_mov_b32 s{S_MEMOFF}, {WS_MEMS}
s_mul_i32 s{S_POFF}, s{S_W}, 2560
s_add_u32 s{S_POFF}, s{S_POFF}, {WS_PBUF}
s_lshl_b32 s{S_PF}, s{S_J}, 15
s_lshl_b32 s{S_T0}, s{S_W}, 13
s_add_u32 s{S_PF}, s{S_PF}, s{S_T0}
s_add_u32 s{S_PF}, s{S_PF}, {WS_DT}
s_add_u32 s{S_PF2}, s{S_PF}, 4096
s_lshl_b32 s{S_UOFF}, s{S_J}, 13
s_lshl_b32 s{S_T0}, s{S_W}, 11
s_add_u32 s{S_UOFF}, s{S_UOFF}, s{S_T0}
s_add_u32 s{S_UOFF}, s{S_UOFF}, {WS_UF}
s_lshl_b32 s{S_POFF2}, s{S_J}, 9
s_add_u32 s{S_POFF2}, s{S_POFF2}, {WS_MEMS+MEMS_STRIDE}
s_mov_b32 s{S_TMO}, 0x40000
s_lshl_b32 s{S_TRC}, s{S_ROLE}, 12
s_add_u32 s{S_TRC}, s{S_TRC}, {WS_TRACE}
s_mov_b32 s{S_DLT}, 32768
""")
    DTS = 0 if P.get('hot') else DT_STRIDE
    def dma_adv():
        return [f"s_add_u32 s{S_PF}, s{S_PF}, {DTS}", f"s_add_u32 s{S_PF2}, s{S_PF2}, {DTS}",
                f"s_add_u32 s{S_SLOT}, s{S_SLOT}, s{S_DLT}", f"s_sub_u32 s{S_DLT}, 0, s{S_DLT}"]
    for g in dma_list(V_L16):
        for x in g: a(x)
    for x in dma_adv(): a(x)
    a("s_waitcnt vmcnt(0)")
    for w in range(1, 4):
        a(f"s_cmp_eq_u32 s{S_W}, {w}")
        a(f"s_cbranch_scc1 C{w}_LOOP")
    for w in range(4):
        L = f"C{w}"
        tr = trace and w == 0
        a(f"{L}_LOOP:")
        stamp(a, tr, 0)
        for r in range(32): a(f"v_mov_b32 v{ACC+r}, 0")
        if not P.get('bench'): poll_mem(a, L, PD, V_O1, V_O2, T)
        a("s_waitcnt lgkmcnt(0)")
        a("s_barrier")
        stamp(a, tr, 1)
        for ks in range(7):
            a(f"ds_read_b128 v[{Mr+4*ks}:{Mr+4*ks+3}], v{V_L16} offset:{L_MEM+ks*1024}")
        def acc(t): return ACC + 4*t
        def smf(t, ks, wr=None):
            if wr is None: wr, _, _ = wreg(t*7+ks)
            return f"v_smfmac_f32_16x16x64_bf16 v[{acc(t)}:{acc(t)+3}], v[{Mr+4*ks}:{Mr+4*ks+3}], {wr}, v{V_IDX}"
        def w7read(ks):
            b = W7 + (ks % 2)*8
            return [f"ds_read_b128 v[{b}:{b+3}], v{V_W7} offset:{ks*2048}", f"ds_read_b128 v[{b+4}:{b+7}], v{V_W7} offset:{ks*2048+1024}"]
        side = {i: [] for i in range(49)}
        if not P.get('nodmac'):
            for k, g in enumerate(dma_list(V_L16)):
                side[7 + w + 4*k] += g
        side[44] += dma_adv()
        side[46] += w7read(0); side[47] += w7read(1)
        for t in range(7):
            for ks in range(7):
                if t == 0: a(f"s_waitcnt lgkmcnt({6-ks})")
                a(smf(t, ks))
                for x in side[t*7+ks]: a(x)
        for ks in range(7):
            b = W7 + (ks % 2)*8
            a(f"s_waitcnt lgkmcnt({2 if ks < 6 else 0})")
            a(smf(7, ks, f"v[{b}:{b+7}]"))
            if ks + 2 < 7:
                for x in w7read(ks+2): a(x)
        DO = Mr
        for hh in range(4):
            for ct in range(2):
                r = DO + (hh*2+ct)*4
                a(f"ds_read_b128 v[{r}:{r+3}], v{V_DT} offset:{(hh*2+ct)*1024}")
        for ct in range(2):
            for pr in range(2):
                xa, xb = acc((2*pr)*2+ct), acc((2*pr+1)*2+ct)
                for r in range(4): a(f"v_permlane32_swap_b32 v{xa+r}, v{xb+r}")
                for r in range(4): a(f"v_add_f32 v{xa+r}, v{xa+r}, v{xb+r}")
                a(f"v_cvt_pk_bf16_f32 v{UA+4*ct+2*pr}, v{xa}, v{xa+1}")
                a(f"v_cvt_pk_bf16_f32 v{UA+4*ct+2*pr+1}, v{xa+2}, v{xa+3}")
        for ct in range(2):
            if not P.get('noust'): a(f"buffer_store_dwordx4 v[{UA+4*ct}:{UA+4*ct+3}], v{V_L16}, {SRD}, s{S_UOFF} offen offset:{ct*1024}")
        a(f"v_add_u32 v{V_DT}, s{S_DLT}, v{V_DT}")
        stamp(a, tr, 2)
        a(f"s_cmp_ge_u32 s{S_STEP}, {nsteps}")
        a(f"s_cbranch_scc1 {L}_DONE")
        PO = ACC; OUT = ACC+12
        for r in range(16): a(f"v_mov_b32 v{OUT+r}, 0")
        if P.get('csleep',0): a(f"s_sleep {P['csleep']}")
        a(f"{L}_PPOLL:")
        a(f"buffer_load_dwordx4 v[{PO}:{PO+3}], v{V_PO}, {SRD}, s{S_POFF} offen sc1")
        a(f"buffer_load_dwordx4 v[{PO+4}:{PO+7}], v{V_PO}, {SRD}, s{S_POFF} offen offset:1024 sc1")
        a(f"buffer_load_dwordx4 v[{PO+8}:{PO+11}], v{V_PO2}, {SRD}, s{S_POFF} offen offset:2048 sc1")
        a("s_waitcnt vmcnt(0)")
        a(f"v_max3_u32 v{T}, v{PO}, v{PO+1}, v{PO+2}")
        a(f"v_max3_u32 v{T+1}, v{PO+3}, v{PO+4}, v{PO+5}")
        a(f"v_max3_u32 v{T}, v{T}, v{PO+6}, v{PO+7}")
        a(f"v_max3_u32 v{T+1}, v{T+1}, v{PO+8}, v{PO+9}")
        a(f"v_max3_u32 v{T}, v{T}, v{PO+10}, v{PO+11}")
        a(f"v_max_u32 v{T}, v{T}, v{T+1}")
        a(f"v_cmp_eq_u32 vcc, -1, v{T}")
        a(f"s_cbranch_vccz {L}_PGOT")
        if P.get('bench'): a(f"s_branch {L}_PGOT")
        a(f"s_add_u32 s{S_ST+14}, s{S_ST+14}, 1")
        a(f"s_sub_u32 s{S_TMO}, s{S_TMO}, 1")
        a(f"s_cbranch_scc0 {L}_PPOLL")
        a(f"s_mov_b32 s{S_TMO}, 0")
        a(f"{L}_PGOT:")
        stamp(a, tr, 3)
        a("s_waitcnt lgkmcnt(0)")
        def out(half, ct):
            r = OUT + (half*2+ct)*4
            return f"v[{r}:{r+3}]"
        for ct in range(2):
            a(f"v_mfma_f32_16x16x32_bf16 {out(0,ct)}, v[{UA+4*ct}:{UA+4*ct+3}], v[{PO+8}:{PO+11}], {out(0,ct)}")
        for hh in range(4):
            for ct in range(2):
                r = DO + (hh*2+ct)*4
                pr = PO + 4*(hh//2)
                a(f"v_mfma_f32_16x16x32_bf16 {out(hh%2,ct)}, v[{r}:{r+3}], v[{pr}:{pr+3}], {out(hh%2,ct)}")
        for ct in range(2):
            for r in range(4):
                lo = OUT + ct*4 + r; hi = OUT + (2+ct)*4 + r
                a(f"v_add_f32_dpp v{lo}, v{hi}, v{lo} row_ror:8 row_mask:0xf bank_mask:0xf")
            a(f"ds_write_b128 v{V_RW}, v[{OUT+4*ct}:{OUT+4*ct+3}] offset:{ct*1024}")
        a("s_waitcnt lgkmcnt(0)")
        a("s_barrier")
        stamp(a, tr, 4)
        if w == 0:
            R = Mr
            for w2 in range(4):
                a(f"ds_read_b128 v[{R+4*w2}:{R+4*w2+3}], v{V_RR} offset:{w2*2048}")
            a("s_waitcnt lgkmcnt(2)")
            a(f"v_pk_add_f32 v[{R}:{R+1}], v[{R}:{R+1}], v[{R+4}:{R+5}]")
            a(f"v_pk_add_f32 v[{R+2}:{R+3}], v[{R+2}:{R+3}], v[{R+6}:{R+7}]")
            a("s_waitcnt lgkmcnt(0)")
            a(f"v_pk_add_f32 v[{R+8}:{R+9}], v[{R+8}:{R+9}], v[{R+12}:{R+13}]")
            a(f"v_pk_add_f32 v[{R+10}:{R+11}], v[{R+10}:{R+11}], v[{R+14}:{R+15}]")
            a(f"v_pk_add_f32 v[{R}:{R+1}], v[{R}:{R+1}], v[{R+8}:{R+9}]")
            a(f"v_pk_add_f32 v[{R+2}:{R+3}], v[{R+2}:{R+3}], v[{R+10}:{R+11}]")
            a(f"v_cvt_pk_bf16_f32 v{R}, v{R}, v{R+1}")
            a(f"v_cvt_pk_bf16_f32 v{R+1}, v{R+2}, v{R+3}")
            a(f"buffer_store_dwordx2 v[{R}:{R+1}], v{V_MS}, {SRD}, s{S_POFF2} offen")
            stamp(a, tr, 5)
            dump_stamps(a, tr, 6, T+4)
        a(f"""
s_add_u32 s{S_MEMOFF}, s{S_MEMOFF}, {MEMS_STRIDE}
s_add_u32 s{S_POFF}, s{S_POFF}, {PBUF_STRIDE}
s_add_u32 s{S_POFF2}, s{S_POFF2}, {MEMS_STRIDE}
s_add_u32 s{S_UOFF}, s{S_UOFF}, {UF_STRIDE}
s_add_u32 s{S_STEP}, s{S_STEP}, 1
s_branch {L}_LOOP
{L}_DONE:
s_waitcnt vmcnt(0)
s_endpgm
""")

def role_PF(a, nsteps, P):
    AH = P.get('pfahead', 3)
    T = 8
    a("ROLE_PF:")
    a(f"""
s_sub_u32 s{S_J}, s{S_ROLE}, {NEED}
s_lshl_b32 s{S_J}, s{S_J}, 2
s_add_u32 s{S_J}, s{S_J}, s{S_W}
v_lshlrev_b32 v2, 6, v1
v_mov_b32 v3, 0
s_mov_b32 s{S_STEP}, 0
s_mov_b32 s{S_TMO}, 0x40000
s_mov_b32 s{S_MEMOFF}, {WS_MEMS}
""")
    def touch(step_sgpr):
        a(f"s_mul_i32 s{S_T0}, s{step_sgpr}, {DT_STRIDE}")
        a(f"s_mul_i32 s{S_T1}, s{S_J}, {14*4096}")
        a(f"s_add_u32 s{S_T0}, s{S_T0}, s{S_T1}")
        a(f"s_add_u32 s{S_T0}, s{S_T0}, {WS_DT}")
        if not P.get('pfnodt'):
            for k in range(14):
                a(f"buffer_load_dword v{T+k}, v2, {SRD}, s{S_T0} offen")
                a(f"s_add_u32 s{S_T0}, s{S_T0}, 4096")
        a(f"s_lshl_b32 s{S_T0}, s{step_sgpr}, 15")
        a(f"s_lshl_b32 s{S_T1}, s{S_J}, 12")
        a(f"s_add_u32 s{S_T0}, s{S_T0}, s{S_T1}")
        a(f"s_add_u32 s{S_T0}, s{S_T0}, {WS_XK}")
        a(f"buffer_load_dword v{T+14}, v2, {SRD}, s{S_T0} offen")
        a(f"s_lshl_b32 s{S_T0}, s{step_sgpr}, 13")
        a(f"s_add_u32 s{S_T0}, s{S_T0}, s{S_T1}")
        a(f"s_add_u32 s{S_T0}, s{S_T0}, {WS_MEMS}")
        a(f"s_mul_i32 s{S_T2}, s{step_sgpr}, {PBUF_STRIDE}")
        a(f"s_add_u32 s{S_T2}, s{S_T2}, s{S_T1}")
        a(f"s_add_u32 s{S_T2}, s{S_T2}, {WS_PBUF - 2*4096}")
        a(f"s_cmp_lt_u32 s{S_J}, 2")
        a(f"s_cselect_b32 s{S_T0}, s{S_T0}, s{S_T2}")
        a(f"buffer_load_dword v{T+15}, v2, {SRD}, s{S_T0} offen")
    for k in range(AH):
        a(f"s_mov_b32 s{S_T3}, {k}")
        touch(S_T3)
    a("PF_LOOP:")
    a("PF_POLL:")
    a(f"buffer_load_dword v4, v3, {SRD}, s{S_MEMOFF} offen sc1")
    a("s_waitcnt vmcnt(0)")
    a("v_readfirstlane_b32 s31, v4")
    a("s_cmp_lg_u32 s31, -1")
    a("s_cbranch_scc1 PF_GOT")
    a("s_sleep 2")
    a(f"s_sub_u32 s{S_TMO}, s{S_TMO}, 1")
    a("s_cbranch_scc0 PF_POLL")
    a(f"s_mov_b32 s{S_TMO}, 0")
    a("PF_GOT:")
    a(f"s_add_u32 s{S_T3}, s{S_STEP}, {AH}")
    touch(S_T3)
    a(f"s_add_u32 s{S_MEMOFF}, s{S_MEMOFF}, {MEMS_STRIDE}")
    a(f"s_add_u32 s{S_STEP}, s{S_STEP}, 1")
    a(f"s_cmp_lt_u32 s{S_STEP}, {64-AH}")
    a("s_cbranch_scc1 PF_LOOP")
    a("s_waitcnt vmcnt(0)")
    a("s_endpgm")

def chain_kernel(name, nsteps=63, trace=False, P=None):
    P = P or {}
    a = Asm()
    a.raw(f".globl {name}\n.p2align 8\n.type {name},@function\n{name}:")
    a("s_cmp_ge_u32 s2, 256")
    a("s_cbranch_scc1 CH_EXIT")
    common_prologue(a)
    election(a, "CH_EXIT")
    a(f"s_cmp_ge_u32 s{S_ROLE}, {NEED}")
    a("s_cbranch_scc1 ROLE_PF")
    a(f"s_cmp_ge_u32 s{S_ROLE}, {NA}")
    a("s_cbranch_scc1 ROLE_C")
    role_A(a, nsteps, trace, P)
    role_C(a, nsteps, trace, P)
    role_PF(a, nsteps, P)
    a("CH_EXIT:")
    a("s_endpgm")
    return a.text()

KD = """
.amdhsa_kernel {name}
  .amdhsa_next_free_vgpr {vgpr}
  .amdhsa_next_free_sgpr 96
  .amdhsa_accum_offset {acc}
  .amdhsa_group_segment_fixed_size 0
  .amdhsa_kernarg_size 120
  .amdhsa_user_sgpr_count 2
  .amdhsa_user_sgpr_kernarg_segment_ptr 1
  .amdhsa_system_sgpr_workgroup_id_x 1
.end_amdhsa_kernel
"""

if __name__ == "__main__":
    import sys
    trace = len(sys.argv) > 1 and sys.argv[1] == 'trace'
    P = {}
    for kv in sys.argv[2:]:
        if '=' in kv:
            k, v = kv.split('='); P[k] = int(v)
    outn = P.pop('out', None)
    name = "chain_kernel"
    src = f"; @launch kernel={name} grid=(256,1,1) block=(256,1,1) lds=163840\n.amdgcn_target \"amdgcn-amd-amdhsa--gfx950\"\n.text\n"
    src += chain_kernel(name, trace=trace, P=P)
    src += '.section .rodata,"a"\n.p2align 6\n' + KD.format(name=name, vgpr=512, acc=256)
    open("chain%s.s" % ("" if outn is None else str(outn)), "w").write(src)
    print("lines", src.count("\n"))
```

```python
import re

_REG = re.compile(r'\b([vas])(?:\[(\d+):(\d+)\]|(\d+)\b)')

def regs_of(op):
    out = []
    op = op.strip()
    neg = op.lstrip('-|').rstrip('|')
    if neg in ('vcc', 'exec', 'm0', 'vcc_lo', 'vcc_hi', 'exec_lo', 'exec_hi'):
        return [('x', neg.split('_')[0])]
    for m in _REG.finditer(op):
        k = m.group(1)
        if m.group(2) is not None:
            for n in range(int(m.group(2)), int(m.group(3)) + 1):
                out.append((k, n))
        else:
            out.append((k, int(m.group(4))))
    return out

MFMA_PASSES = {
    'v_mfma_f32_16x16x32_bf16': 4, 'v_mfma_f32_16x16x16_bf16': 4, 'v_smfmac_f32_16x16x64_bf16': 4,
    'v_mfma_f32_32x32x16_bf16': 8, 'v_mfma_f32_32x32x8_bf16': 8, 'v_smfmac_f32_32x32x32_bf16': 8,
}
TRANS = ('v_exp_f32', 'v_log_f32', 'v_rcp_f32', 'v_rsq_f32', 'v_sqrt_f32', 'v_sin_f32', 'v_cos_f32')

class Ins:
    __slots__ = ('text', 'op', 'kind', 'defs', 'uses', 'passes', 'srcc', 'srcab', 'dpp', 'ws', 'storedata')

def split_ops(s):
    out, depth, cur = [], 0, ''
    for ch in s:
        if ch == '[': depth += 1
        if ch == ']': depth -= 1
        if ch == ',' and depth == 0:
            out.append(cur.strip()); cur = ''
        else:
            cur += ch
    if cur.strip(): out.append(cur.strip())
    return out

def parse(text):
    I = Ins(); I.text = text; I.passes = 0; I.srcc = []; I.srcab = []; I.dpp = False; I.ws = 1; I.storedata = []
    t = text.split(';')[0].strip()
    m = re.match(r'(\S+)\s*(.*)', t)
    op = m.group(1); rest = m.group(2)
    op = re.sub(r'_e(32|64)$', '', op)
    I.op = op
    ops = split_ops(rest)
    mods = ''
    if ops:
        parts = ops[-1].split(None, 1)
        if len(parts) > 1 and not ops[-1].startswith('hwreg'):
            ops[-1] = parts[0]; mods = parts[1]
    I.defs, I.uses = [], []
    R = regs_of
    if op == 's_nop':
        I.kind = 'nop'; I.ws = int(ops[0], 0) + 1
    elif op in MFMA_PASSES:
        I.kind = 'mfma'; I.passes = MFMA_PASSES[op]
        I.defs = R(ops[0])
        if op.startswith('v_smfmac'):
            I.srcab = R(ops[1]) + R(ops[2]) + R(ops[3]); I.srcc = R(ops[0])
        else:
            I.srcab = R(ops[1]) + R(ops[2]); I.srcc = R(ops[3])
        I.uses = I.srcab + I.srcc
    elif op.startswith('v_cmp'):
        I.kind = 'valu'; I.defs = R(ops[0]); I.uses = sum((R(o) for o in ops[1:]), [])
        if op.startswith('v_cmpx'): I.defs += [('x', 'exec')]
    elif op in ('v_readfirstlane_b32', 'v_readlane_b32'):
        I.kind = 'readlane'; I.defs = R(ops[0]); I.uses = sum((R(o) for o in ops[1:]), [])
    elif op.startswith('v_permlane') and 'swap' in op:
        I.kind = 'permlane'; I.defs = R(ops[0]) + R(ops[1]); I.uses = R(ops[0]) + R(ops[1])
    elif op.startswith('v_'):
        I.kind = 'trans' if op in TRANS else 'valu'
        I.dpp = ('row_' in mods or 'quad_perm' in mods or op.endswith('_dpp'))
        nd = 1
        if op in ('v_add_co_u32', 'v_sub_co_u32', 'v_addc_co_u32', 'v_subb_co_u32', 'v_subrev_co_u32'): nd = 2
        I.defs = sum((R(o) for o in ops[:nd]), [])
        I.uses = sum((R(o) for o in ops[nd:]), [])
        if op.startswith('v_fmac') or op.startswith('v_pk_fmac') or op.startswith('v_dot2c') or op == 'v_writelane_b32' or I.dpp:
            I.uses += R(ops[0])
        if op == 'v_cndmask_b32' and len(ops) == 3: I.uses += [('x', 'vcc')]
    elif op.startswith('ds_'):
        I.kind = 'ds'
        if op.startswith('ds_read') or op.startswith('ds_bpermute') or op.startswith('ds_swizzle') or op.startswith('ds_permute'):
            I.defs = R(ops[0]); I.uses = sum((R(o) for o in ops[1:]), [])
        else:
            I.uses = sum((R(o) for o in ops), [])
    elif op.startswith('global_') or op.startswith('buffer_'):
        I.kind = 'vmem'
        lds = ' lds' in (' ' + mods) or '_lds_' in op
        if op in ('buffer_inv', 'buffer_wbl2'):
            pass
        elif 'load' in op and not lds:
            I.defs = R(ops[0]); I.uses = sum((R(o) for o in ops[1:]), [])
        elif 'load' in op:
            I.uses = sum((R(o) for o in ops), []) + [('x', 'm0')]; I.kind = 'ldsdma'
        elif 'store' in op:
            I.uses = sum((R(o) for o in ops), [])
            if 'x4' in op or 'x3' in op:
                I.storedata = R(ops[1]) if op.startswith('global_') else R(ops[0])
        elif 'atomic' in op:
            if 'sc0' in mods:
                I.defs = R(ops[0]); I.uses = sum((R(o) for o in ops[1:]), [])
            else:
                I.uses = sum((R(o) for o in ops), [])
    elif op.startswith('s_'):
        I.kind = 'salu'
        if op.startswith('s_cmp') or op.startswith('s_cbranch') or op in ('s_branch', 's_barrier', 's_waitcnt', 's_endpgm', 's_sleep', 's_setprio', 's_bitcmp1_b32', 's_bitcmp0_b32', 's_setreg_b32'):
            I.uses = sum((R(o) for o in ops), [])
        else:
            I.defs = R(ops[0]) if ops else []
            I.uses = sum((R(o) for o in ops[1:]), [])
            if 'saveexec' in op: I.defs += [('x', 'exec')]
    else:
        raise ValueError('unknown instr ' + text)
    return I

class Asm:
    def __init__(self):
        self.lines = []
        self.hist = []
        self.pos = 0
        self.nnops = 0
    def raw(self, s):
        self.lines.append(s)
    def comment(self, s):
        self.lines.append('    ; ' + s)
    def label(self, name, flush=True):
        if flush: self.flush()
        self.lines.append(name + ':')
    def flush(self, branch=False):
        need = 0
        for (h, p) in self.hist:
            d = self.pos - p - 1
            if h.kind == 'mfma': w = 12 if h.passes == 8 else 8
            elif h.kind in ('valu', 'trans', 'permlane', 'readlane'):
                w = 5 if any(k in ('s', 'x') for k, _ in h.defs) else 2
                if branch and all(d_ == ('x', 'vcc') for d_ in h.defs): w = 0
            elif h.storedata: w = 2
            else: w = 1 if any(d_ == ('x', 'm0') for d_ in h.defs) else 0
            need = max(need, w - d)
        self._nop(need)
        self.hist = []
    def _nop(self, n):
        while n > 0:
            k = min(n, 16)
            self.lines.append('    s_nop %d' % (k - 1)); self.pos += k; self.nnops += 1
            n -= k
    def need(self, I):
        need = 0
        U = set(I.uses); D = set(I.defs)
        isvalu = I.kind in ('valu', 'trans', 'permlane', 'readlane')
        for (h, p) in self.hist:
            el = self.pos - p - h.ws
            w = 0
            hd = set(h.defs)
            if h.kind == 'mfma':
                P = h.passes
                if I.kind == 'mfma':
                    if hd & set(I.srcab): w = max(w, 12 if P == 8 else 8)
                    if hd & set(I.srcc):
                        if I.srcc == h.defs and I.passes == P: w = max(w, 0)
                        else: w = max(w, 10 if P == 8 else 6)
                    elif hd & D: w = max(w, 10 if P == 8 else 6)
                else:
                    if hd & (U | D): w = max(w, 12 if P == 8 else 8)
                    if isvalu and set(h.srcc) & D: w = max(w, 7 if P == 8 else 3)
            elif h.kind in ('valu', 'trans', 'permlane', 'readlane'):
                vd = {x for x in hd if x[0] in 'va'}
                sd = {x for x in hd if x[0] in 'sx'}
                if I.kind == 'mfma' and vd & U: w = max(w, 2)
                if I.kind == 'mfma' and ('x', 'exec') in sd: w = max(w, 4)
                if I.dpp and vd & U: w = max(w, 2)
                if I.kind == 'permlane' and vd & U: w = max(w, 2)
                if I.kind == 'readlane' and vd & U: w = max(w, 1)
                if h.kind == 'trans' and isvalu and I.kind != 'trans' and vd & U: w = max(w, 1)
                if h.kind == 'trans' and I.kind in ('ds', 'vmem') and vd & U: w = max(w, 1)
                if isvalu and sd & U: w = max(w, 4 if I.kind == 'readlane' else 2)
                if I.kind in ('vmem', 'ldsdma') and sd & U: w = max(w, 5)
                if I.kind == 'salu' and sd & U and I.op.startswith('s_cbranch'): w = max(w, 0)
                if I.kind == 'salu' and sd & U and not I.op.startswith('s_cbranch'): w = max(w, 1)
            elif h.kind == 'vmem' and h.storedata:
                if set(h.storedata) & D: w = max(w, 2 if isvalu else 1)
            elif h.kind == 'salu':
                if ('x', 'm0') in hd and I.kind == 'ldsdma': w = max(w, 1)
                if ('x', 'exec') in hd and I.dpp: w = max(w, 1)
            need = max(need, w - el)
        return need
    def __call__(self, text):
        for ln in text.strip('\n').split('\n'):
            ln = ln.strip()
            if not ln: continue
            if ln.startswith(';'):
                self.lines.append('    ' + ln); continue
            if ln.endswith(':'):
                self.label(ln[:-1]); continue
            I = parse(ln)
            if I.op.startswith('s_cbranch') or I.op == 's_branch':
                self.flush(branch=True)
            n = self.need(I)
            self._nop(n)
            self.lines.append('    ' + ln)
            self.hist.append((I, self.pos))
            self.pos += I.ws
            if len(self.hist) > 24: self.hist = [(h, p) for (h, p) in self.hist if self.pos - p < 20]
            if I.op in ('s_branch', 's_endpgm', 's_setpc_b64'):
                self.hist = []
    def text(self):
        return '\n'.join(self.lines) + '\n'
```

```python
from emit import Asm
from layout import *
from kgemm1 import std_prologue
from kprep import mk_srd
SRD = "s[8:11]"

ATT_GRID = 64
def att_body(a, pfx, s_seg, end="s_endpgm"):
    L_K = 0
    L_M = 28672
    L_PX = 36864
    L_PM = 45056
    L_ST = 49152
    V_L16=2; V_N=3; V_G=4; V_MK=5; V_PXW=6; V_PMW=7; V_PMR=8; V_T=9
    KB=16
    SA=40
    OUT=64
    UFR=120
    PB=148
    PMB=180
    X=188
    a(f"""
v_lshlrev_b32 v{V_L16}, 4, v1
v_and_b32 v{V_N}, 15, v1
v_lshrrev_b32 v{V_G}, 4, v1
s_mov_b32 s20, s{s_seg}
""")
    a(f"""
s_mul_i32 s21, s20, 28672
s_mul_i32 s22, s18, 7168
s_add_u32 s21, s21, s22
s_add_u32 s21, s21, {WS_XK2}
""")
    for k in range(7):
        if k % 4 == 0:
            a(f"s_add_u32 m0, s22, {L_K + k*1024}")
            a(f"s_add_u32 s23, s21, {k*1024}")
        a(f"buffer_load_dwordx4 v{V_L16}, {SRD}, s23 offen offset:{(k%4)*1024} lds")
    a(f"""
s_lshl_b32 s21, s20, 13
s_lshl_b32 s22, s18, 11
s_add_u32 s21, s21, s22
s_add_u32 s21, s21, {WS_MEMS}
s_add_u32 m0, s22, {L_M}
""")
    a(f"buffer_load_dwordx4 v{V_L16}, {SRD}, s21 offen lds")
    a(f"buffer_load_dwordx4 v{V_L16}, {SRD}, s21 offen offset:1024 lds")
    a(f"""
v_lshrrev_b32 v{V_T}, 1, v{V_G}
v_lshlrev_b32 v{V_T}, 7, v{V_T}
v_and_b32 v{V_T+1}, 7, v1
v_lshl_add_u32 v{V_T}, v{V_T+1}, 4, v{V_T}
v_and_b32 v{V_T+1}, 1, v{V_G}
v_lshl_add_u32 v{V_T}, v{V_T+1}, 3, v{V_T}
v_add_u32 v{V_MK}, {L_M}, v{V_T}
s_lshl_b32 s22, s18, 11
s_add_u32 s22, s22, {L_PX}
v_add_u32 v{V_PXW}, s22, v{V_L16}
s_lshl_b32 s22, s18, 10
s_add_u32 s22, s22, {L_PM}
v_lshlrev_b32 v{V_T}, 3, v1
v_add_u32 v{V_PMW}, s22, v{V_T}
v_lshrrev_b32 v{V_T+1}, 1, v{V_G}
v_lshl_add_u32 v{V_PMR}, v{V_T+1}, 10, v{V_T}
v_add_u32 v{V_PMR}, {L_PM}, v{V_PMR}
""")
    a(f"v_lshlrev_b32 v{V_T}, 2, v{V_G}")
    for r in range(4):
        a(f"v_add_u32 v{V_T+1}, {r}, v{V_T}")
        a(f"v_cmp_le_u32 s[{40+2*r}:{41+2*r}], v{V_T+1}, v{V_N}")
    for r in range(56): a(f"v_mov_b32 v{OUT+r}, 0")
    a(f"""
s_lshl_b32 s24, s20, 1
s_mul_i32 s24, s24, 14336
s_mul_i32 s25, s18, {128*14336}
s_add_u32 s24, s24, s25
s_add_u32 s24, s24, {WS_TX}
s_mul_i32 s25, s20, {DT_STRIDE}
s_add_u32 s25, s25, {WS_DT}
s_mul_i32 s26, s20, {UF_STRIDE}
s_add_u32 s26, s26, {WS_UF}
s_mov_b32 s27, 0
""")
    def tx_loads():
        a("s_mov_b32 s28, s24")
        for f in range(28):
            a(f"buffer_load_dwordx4 a[{4*f}:{4*f+3}], v{V_L16}, {SRD}, s28 offen offset:{(f%4)*1024}")
            if f % 4 == 3: a("s_add_u32 s28, s28, 4096")
        a(f"s_add_u32 s24, s24, {4*128*14336}")
    tx_loads()
    a("s_waitcnt vmcnt(28)")
    a("s_barrier")
    a(f"{pfx}_ROUND:")
    for t in range(7):
        a(f"s_mul_i32 s29, s18, 7")
        a(f"s_add_u32 s29, s29, {t}")
        a("s_lshr_b32 s30, s29, 1")
        a("s_and_b32 s31, s29, 1")
        a("s_lshl_b32 s32, s30, 5")
        a("s_add_u32 s32, s32, s31")
        a("s_lshl_b32 s33, s27, 3")
        a("s_add_u32 s32, s32, s33")
        a("s_lshl_b32 s32, s32, 10")
        a("s_add_u32 s32, s32, s25")
        a("s_add_u32 s34, s32, 4096")
        for hh in range(4):
            r = 112 + (hh*7+t)*4
            a(f"buffer_load_dwordx4 a[{r}:{r+3}], v{V_L16}, {SRD}, s{32 if hh < 2 else 34} offen offset:{(hh%2)*2048}")
        a("s_lshl_b32 s32, s30, 3")
        a("s_add_u32 s32, s32, s31")
        a("s_lshl_b32 s33, s27, 1")
        a("s_add_u32 s32, s32, s33")
        a("s_lshl_b32 s32, s32, 10")
        a("s_add_u32 s32, s32, s26")
        a(f"buffer_load_dwordx4 v[{UFR+4*t}:{UFR+4*t+3}], v{V_L16}, {SRD}, s32 offen")
    for r in range(24): a(f"v_mov_b32 v{SA+r}, 0")
    def kread(cp):
        b = KB + (cp % 2)*12
        a(f"ds_read2_b64 v[{b}:{b+3}], v{V_MK} offset0:{(cp*512)//8 % 256} offset1:{(cp*512+256)//8 % 256}" if cp*512+256 < 2048 else
          f"ds_read_b64 v[{b}:{b+1}], v{V_MK} offset:{cp*512}")
        if not cp*512+256 < 2048:
            a(f"ds_read_b64 v[{b+2}:{b+3}], v{V_MK} offset:{cp*512+256}")
        a(f"ds_read_b128 v[{b+4}:{b+7}], v{V_L16} offset:{L_K + cp*1024}")
        a(f"ds_read_b128 v[{b+8}:{b+11}], v{V_L16} offset:{L_K + 14336 + cp*1024}")
    a("s_waitcnt vmcnt(35)")
    kread(0)
    for cp in range(14):
        if cp + 1 < 14:
            kread(cp+1)
            n = 3 if (cp+1)*512+256 < 2048 else 4
            a(f"s_waitcnt lgkmcnt({n})")
        else:
            a("s_waitcnt lgkmcnt(0)")
        b = KB + (cp % 2)*12
        for kt in range(3):
            for qt in range(2):
                if kt == 2 and qt == 0: continue
                c = SA + (kt*2+qt)*4; tx = (qt*14+cp)*4
                a(f"v_mfma_f32_16x16x32_bf16 v[{c}:{c+3}], v[{b+4*kt}:{b+4*kt+3}], a[{tx}:{tx+3}], v[{c}:{c+3}]")
    a("s_cmp_ge_u32 s27, 3")
    a(f"s_cbranch_scc1 {pfx}_NOTX")
    tx_loads()
    a(f"{pfx}_NOTX:")
    a(f"v_mov_b32 v{X+30}, 0xff800000")
    for qt in range(2):
        S0 = SA + (0*2+qt)*4; S1 = SA + (1*2+qt)*4; S2 = SA + (2*2+qt)*4
        diag = S1 if qt == 0 else S2
        for r in range(4):
            a(f"v_cndmask_b32 v{diag+r}, v{X+30}, v{diag+r}, s[{40+2*r}:{41+2*r}]")
        m = X + qt*4; u = m+1; sm = m+2
        vals = [S0+r for r in range(4)] + [S1+r for r in range(4)] + ([S2+r for r in range(4)] if qt == 1 else [])
        a(f"v_max3_f32 v{m}, v{vals[0]}, v{vals[1]}, v{vals[2]}")
        k = 3
        while k < len(vals):
            if k + 1 < len(vals): a(f"v_max3_f32 v{m}, v{m}, v{vals[k]}, v{vals[k+1]}"); k += 2
            else: a(f"v_max_f32 v{m}, v{m}, v{vals[k]}"); k += 1
        for sw in ("v_permlane16_swap_b32", "v_permlane32_swap_b32"):
            a(f"v_mov_b32 v{u}, v{m}")
            a(f"{sw} v{m}, v{u}")
            a(f"v_max_f32 v{m}, v{m}, v{u}")
        for v in vals: a(f"v_sub_f32 v{v}, v{v}, v{m}")
        for v in vals: a(f"v_exp_f32 v{v}, v{v}")
        a(f"v_add_f32 v{sm}, v{S0}, v{S0+1}")
        a(f"v_add_f32 v{sm}, v{sm}, v{S0+2}")
        a(f"v_add_f32 v{sm}, v{sm}, v{S0+3}")
        a(f"v_mul_f32 v{sm}, 0.5, v{sm}")
        for v in vals[4:]: a(f"v_add_f32 v{sm}, v{sm}, v{v}")
        for sw in ("v_permlane16_swap_b32", "v_permlane32_swap_b32"):
            a(f"v_mov_b32 v{u}, v{sm}")
            a(f"{sw} v{sm}, v{u}")
            a(f"v_add_f32 v{sm}, v{sm}, v{u}")
        a(f"v_rcp_f32 v{sm}, v{sm}")
        for v in vals: a(f"v_mul_f32 v{v}, v{v}, v{sm}")
        o = X + 8 + qt*8
        a(f"v_cvt_pk_bf16_f32 v{o}, v{S1}, v{S1+1}")
        a(f"v_cvt_pk_bf16_f32 v{o+1}, v{S1+2}, v{S1+3}")
        if qt == 1:
            a(f"v_cvt_pk_bf16_f32 v{o+2}, v{S2}, v{S2+1}")
            a(f"v_cvt_pk_bf16_f32 v{o+3}, v{S2+2}, v{S2+3}")
        else:
            a(f"v_mov_b32 v{o+2}, 0")
            a(f"v_mov_b32 v{o+3}, 0")
        a(f"v_cvt_pk_bf16_f32 v{o+4}, v{S0}, v{S0+1}")
        a(f"v_cvt_pk_bf16_f32 v{o+5}, v{S0+2}, v{S0+3}")
        a(f"ds_write_b128 v{V_PXW}, v[{o}:{o+3}] offset:{qt*1024}")
        a(f"ds_write_b64 v{V_PMW}, v[{o+4}:{o+5}] offset:{qt*512}")
    a("s_waitcnt lgkmcnt(0)")
    a("s_barrier")
    for hh in range(4):
        for qt in range(2):
            r = PB + (hh*2+qt)*4
            a(f"ds_read_b128 v[{r}:{r+3}], v{V_L16} offset:{L_PX + hh*2048 + qt*1024}")
    for qt in range(2):
        r = PMB + qt*4
        a(f"ds_read_b64 v[{r}:{r+1}], v{V_PMR} offset:{qt*512}")
        a(f"ds_read_b64 v[{r+2}:{r+3}], v{V_PMR} offset:{2048 + qt*512}")
    a("s_cmp_ge_u32 s27, 3")
    a(f"s_cbranch_scc1 {pfx}_W0")
    a("s_waitcnt vmcnt(28)")
    a(f"s_branch {pfx}_W1")
    a(f"{pfx}_W0:")
    a("s_waitcnt vmcnt(0)")
    a(f"{pfx}_W1:")
    a("s_waitcnt lgkmcnt(0)")
    for hh in range(4):
        for t in range(7):
            for qt in range(2):
                c = OUT + (t*2+qt)*4; d = 112 + (hh*7+t)*4; p = PB + (hh*2+qt)*4
                a(f"v_mfma_f32_16x16x32_bf16 v[{c}:{c+3}], a[{d}:{d+3}], v[{p}:{p+3}], v[{c}:{c+3}]")
    for t in range(7):
        for qt in range(2):
            c = OUT + (t*2+qt)*4; p = PMB + qt*4
            a(f"v_mfma_f32_16x16x32_bf16 v[{c}:{c+3}], v[{UFR+4*t}:{UFR+4*t+3}], v[{p}:{p+3}], v[{c}:{c+3}]")
    a("s_barrier")
    a("s_add_u32 s27, s27, 1")
    a("s_cmp_lt_u32 s27, 4")
    a(f"s_cbranch_scc1 {pfx}_ROUND")
    a(f"s_load_dwordx2 s[16:17], s[0:1], {KA_X}")
    a("s_waitcnt lgkmcnt(0)")
    mk_srd(a, 12, 16, S_TOK*DM*2)
    a(f"""
v_mul_u32_u24 v{V_T}, 896, v{V_N}
v_lshl_add_u32 v{V_T}, v{V_G}, 3, v{V_T}
s_mul_i32 s21, s20, {32*896}
s_mul_i32 s22, s18, 224
s_add_u32 s21, s21, s22
s_add_u32 s22, s21, {16*896}
""")
    XR = 16
    for t in range(7):
        for qt in range(2):
            r = XR + (t*2+qt)*2
            a(f"buffer_load_dwordx2 v[{r}:{r+1}], v{V_T}, s[12:15], s{21+qt} offen offset:{t*32}")
    a("s_waitcnt vmcnt(0)")
    for t in range(7):
        for qt in range(2):
            r = XR + (t*2+qt)*2; c = OUT + (t*2+qt)*4
            for k in range(2):
                a(f"v_lshlrev_b32 v{X}, 16, v{r+k}")
                a(f"v_and_b32 v{X+1}, 0xffff0000, v{r+k}")
                a(f"v_add_f32 v{c+2*k}, v{c+2*k}, v{X}")
                a(f"v_add_f32 v{c+2*k+1}, v{c+2*k+1}, v{X+1}")
    a(f"""
v_mul_u32_u24 v{V_T+1}, 1792, v{V_N}
v_lshl_add_u32 v{V_T+1}, v{V_G}, 4, v{V_T+1}
s_mul_i32 s21, s20, {32*1792}
s_mul_i32 s22, s18, 448
s_add_u32 s21, s21, s22
s_add_u32 s21, s21, {WS_H}
s_add_u32 s22, s21, {16*1792}
""")
    for t in range(7):
        for qt in range(2):
            c = OUT + (t*2+qt)*4
            a(f"buffer_store_dwordx4 v[{c}:{c+3}], v{V_T+1}, {SRD}, s{21+qt} offen offset:{t*64}")
    for qt in range(2):
        s1 = X + qt*2; s2 = s1+1
        first = True
        for t in range(7):
            c = OUT + (t*2+qt)*4
            for r in range(4):
                if first:
                    a(f"v_mov_b32 v{s1}, v{c+r}"); a(f"v_mul_f32 v{s2}, v{c+r}, v{c+r}"); first = False
                else:
                    a(f"v_add_f32 v{s1}, v{s1}, v{c+r}"); a(f"v_fmac_f32 v{s2}, v{c+r}, v{c+r}")
    for sw in ("v_permlane16_swap_b32", "v_permlane32_swap_b32"):
        for k in range(4): a(f"v_mov_b32 v{X+4+k}, v{X+k}")
        for k in range(4): a(f"{sw} v{X+k}, v{X+4+k}")
        for k in range(4): a(f"v_add_f32 v{X+k}, v{X+k}, v{X+4+k}")
    a(f"s_lshl_b32 s21, s18, 8")
    a(f"v_lshlrev_b32 v{X+8}, 3, v{V_N}")
    a(f"v_add_u32 v{X+9}, s21, v{X+8}")
    a(f"ds_write_b64 v{X+9}, v[{X}:{X+1}] offset:{L_ST}")
    a(f"ds_write_b64 v{X+9}, v[{X+2}:{X+3}] offset:{L_ST+128}")
    a("s_waitcnt lgkmcnt(0)")
    a("s_barrier")
    for qt in range(2):
        for w in range(4):
            r = X+10 + (qt*4+w)*2
            a(f"ds_read_b64 v[{r}:{r+1}], v{X+8} offset:{L_ST + w*256 + qt*128}")
    a("s_waitcnt lgkmcnt(0)")
    a("s_mov_b32 s24, 0x3b124925")
    a(f"v_mov_b32 v{X+28}, 0x3727c5ac")
    for qt in range(2):
        r = X+10 + qt*8
        for k in range(2):
            a(f"v_add_f32 v{r+k}, v{r+k}, v{r+2+k}")
            a(f"v_add_f32 v{r+4+k}, v{r+4+k}, v{r+6+k}")
            a(f"v_add_f32 v{r+k}, v{r+k}, v{r+4+k}")
        a(f"v_mul_f32 v{r}, s24, v{r}")
        a(f"v_mul_f32 v{r+1}, s24, v{r+1}")
        a(f"v_fma_f32 v{r+1}, -v{r}, v{r}, v{r+1}")
        a(f"v_max_f32 v{r+1}, 0, v{r+1}")
        a(f"v_add_f32 v{r+1}, v{r+1}, v{X+28}")
        a(f"v_rsq_f32 v{r+1}, v{r+1}")
    a(f"s_mul_i32 s21, s20, {2*14336}")
    a(f"s_add_u32 s21, s21, {WS_HNF}")
    for t in range(7):
        a("s_mul_i32 s22, s18, 7")
        a(f"s_add_u32 s22, s22, {t}")
        a("s_lshr_b32 s23, s22, 1")
        a("s_lshl_b32 s23, s23, 10")
        a("s_and_b32 s22, s22, 1")
        a("s_lshl_b32 s22, s22, 3")
        a("s_add_u32 s23, s23, s22")
        a("s_add_u32 s23, s23, s21")
        a("s_add_u32 s25, s23, 14336")
        for qt in range(2):
            c = OUT + (t*2+qt)*4; r = X+10 + qt*8; o = 16 + (t*2+qt)*2
            for k in range(4):
                a(f"v_sub_f32 v{c+k}, v{c+k}, v{r}")
                a(f"v_mul_f32 v{c+k}, v{c+k}, v{r+1}")
            a(f"v_cvt_pk_bf16_f32 v{o}, v{c}, v{c+1}")
            a(f"v_cvt_pk_bf16_f32 v{o+1}, v{c+2}, v{c+3}")
            a(f"buffer_store_dwordx2 v[{o}:{o+1}], v{V_L16}, {SRD}, s{23 if qt == 0 else 25} offen")
    a("s_waitcnt vmcnt(0)")
    a(end)

def att_kernel(name):
    a = Asm()
    a.raw(f".globl {name}\n.p2align 8\n.type {name},@function\n{name}:")
    std_prologue(a, ATT_GRID, "AT_EXIT")
    att_body(a, "AT", 2)
    a("AT_EXIT:")
    a("s_endpgm")
    return a.text()

F1_GRID = 224
def ffn1_body(a, pfx, s_unit, end="s_endpgm"):
    a(f"""
s_mul_hi_u32 s21, s{s_unit}, {-(-(1<<32)//7)}
s_mul_i32 s22, s21, 7
s_sub_u32 s20, s{s_unit}, s22
v_lshlrev_b32 v2, 4, v1
s_lshl_b32 s24, s20, 4
s_lshl_b32 s25, s18, 2
s_add_u32 s24, s24, s25
s_mul_i32 s25, s24, 14336
s_add_u32 s25, s25, {WS_W1F}
""")
    a(f"""
s_mul_i32 s30, s21, {2*28672}
s_mul_i32 s31, s18, 14336
s_add_u32 s30, s30, s31
s_add_u32 s30, s30, {WS_HNF}
""")
    for k in range(14):
        if k % 4 == 0:
            a(f"s_add_u32 m0, s31, {k*1024}")
            a(f"s_add_u32 s33, s30, {k*1024}")
        a(f"buffer_load_dwordx4 v2, {SRD}, s33 offen offset:{(k%4)*1024} lds")
    for q in range(4):
        for kk in range(14):
            r = (q*14+kk)*4
            a(f"buffer_load_dwordx4 a[{r}:{r+3}], v2, {SRD}, s25 offen offset:{(kk%4)*1024}")
            if kk % 4 == 3 or kk == 13:
                a(f"s_add_u32 s25, s25, {4096 if kk != 13 else 2048}")
    a(f"s_load_dwordx2 s[16:17], s[0:1], {KA_B1}")
    a("s_waitcnt lgkmcnt(0)")
    mk_srd(a, 12, 16, FF*2)
    a("v_lshrrev_b32 v4, 4, v1")
    a("v_lshlrev_b32 v4, 3, v4")
    a("s_lshl_b32 s26, s24, 5")
    BI = 96
    for q in range(4):
        a(f"buffer_load_dwordx2 v[{BI+16+2*q}:{BI+17+2*q}], v4, s[12:15], s26 offen offset:{q*32}")
    a("s_waitcnt vmcnt(0)")
    for q in range(4):
        for k in range(2):
            a(f"v_lshlrev_b32 v{BI+4*q+2*k}, 16, v{BI+16+2*q+k}")
            a(f"v_and_b32 v{BI+4*q+2*k+1}, 0xffff0000, v{BI+16+2*q+k}")
    a("s_barrier")
    a(f"""
s_lshr_b32 s27, s24, 1
s_lshl_b32 s27, s27, 10
s_mul_i32 s28, s21, {4*56*1024}
s_add_u32 s28, s28, s27
s_add_u32 s28, s28, {WS_ACT}
""")
    ACC = 32; XB = 8
    for sg in range(2):
        for r in range(32): a(f"v_mov_b32 v{ACC+r}, 0")
        def rd(kk):
            b = XB + (kk % 2)*8
            a(f"ds_read_b128 v[{b}:{b+3}], v2 offset:{sg*28672 + kk*1024}")
            a(f"ds_read_b128 v[{b+4}:{b+7}], v2 offset:{sg*28672 + 14336 + kk*1024}")
        rd(0)
        for kk in range(14):
            if kk + 1 < 14: rd(kk+1)
            a(f"s_waitcnt lgkmcnt({2 if kk + 1 < 14 else 0})")
            b = XB + (kk % 2)*8
            for q in range(4):
                for tt in range(2):
                    c = ACC + (q*2+tt)*4
                    a(f"v_mfma_f32_16x16x32_bf16 v[{c}:{c+3}], a[{(q*14+kk)*4}:{(q*14+kk)*4+3}], v[{b+4*tt}:{b+4*tt+3}], v[{c}:{c+3}]")
        for q in range(4):
            for tt in range(2):
                c = ACC + (q*2+tt)*4
                for r in range(4):
                    a(f"v_add_f32 v{c+r}, v{c+r}, v{BI+4*q+r}")
                    a(f"v_max_f32 v{c+r}, 0, v{c+r}")
                    a(f"v_mul_f32 v{c+r}, v{c+r}, v{c+r}")
        O = 64
        for tt in range(2):
            for qp in range(2):
                c1 = ACC + ((2*qp)*2+tt)*4; c2 = ACC + ((2*qp+1)*2+tt)*4; o = O + (tt*2+qp)*4
                a(f"v_cvt_pk_bf16_f32 v{o}, v{c1}, v{c1+1}")
                a(f"v_cvt_pk_bf16_f32 v{o+1}, v{c1+2}, v{c1+3}")
                a(f"v_cvt_pk_bf16_f32 v{o+2}, v{c2}, v{c2+1}")
                a(f"v_cvt_pk_bf16_f32 v{o+3}, v{c2+2}, v{c2+3}")
                a(f"buffer_store_dwordx4 v[{o}:{o+3}], v2, {SRD}, s28 offen offset:{qp*1024}")
            a(f"s_add_u32 s28, s28, {56*1024}")
    a("s_waitcnt vmcnt(0)")
    a(end)

def ffn1_kernel(name):
    a = Asm()
    a.raw(f".globl {name}\n.p2align 8\n.type {name},@function\n{name}:")
    std_prologue(a, F1_GRID, "F1_EXIT")
    ffn1_body(a, "F1", 2)
    a("F1_EXIT:")
    a("s_endpgm")
    return a.text()

F2_GRID = 256
def ffn2_body(a, pfx, s_unit, end="s_endpgm"):
    a(f"""
s_lshr_b32 s20, s{s_unit}, 2
s_and_b32 s21, s{s_unit}, 3
v_lshlrev_b32 v2, 4, v1
s_mul_i32 s22, s21, {7*56*1024}
s_mul_i32 s23, s18, 14336
s_add_u32 s22, s22, s23
s_add_u32 s22, s22, {WS_W2F}
s_mul_i32 s24, s20, {2*56*1024}
s_add_u32 s24, s24, s23
s_add_u32 s24, s24, {WS_ACT}
s_add_u32 s25, s24, {56*1024}
""")
    ACC = 8
    B0 = 64
    for r in range(56): a(f"v_mov_b32 v{ACC+r}, 0")
    def ld(f):
        b = B0 + (f % 2)*36
        for t in range(7):
            a(f"s_add_u32 s26, s22, {t*56*1024 + f*1024}")
            a(f"buffer_load_dwordx4 v[{b+4*t}:{b+4*t+3}], v2, {SRD}, s26 offen")
        a(f"s_add_u32 s26, s24, {f*1024}")
        a(f"buffer_load_dwordx4 v[{b+28}:{b+31}], v2, {SRD}, s26 offen")
        a(f"s_add_u32 s26, s25, {f*1024}")
        a(f"buffer_load_dwordx4 v[{b+32}:{b+35}], v2, {SRD}, s26 offen")
    ld(0)
    for f in range(14):
        if f + 1 < 14: ld(f+1)
        a(f"s_waitcnt vmcnt({9 if f + 1 < 14 else 0})")
        b = B0 + (f % 2)*36
        for t in range(7):
            for tt in range(2):
                c = ACC + (t*2+tt)*4
                a(f"v_mfma_f32_16x16x32_bf16 v[{c}:{c+3}], v[{b+4*t}:{b+4*t+3}], v[{b+28+4*tt}:{b+31+4*tt}], v[{c}:{c+3}]")
    a("s_mul_i32 s26, s18, 14336")
    a("v_add_u32 v3, s26, v2")
    for k in range(14):
        a(f"ds_write_b128 v3, v[{ACC+4*k}:{ACC+4*k+3}] offset:{k*1024}")
    a("s_waitcnt lgkmcnt(0)")
    a("s_barrier")
    a(f"s_load_dwordx2 s[16:17], s[0:1], {KA_B2}")
    a(f"s_load_dwordx2 s[28:29], s[0:1], {KA_OUT}")
    a("s_waitcnt lgkmcnt(0)")
    mk_srd(a, 12, 16, DM*2)
    mk_srd(a, 36, 28, S_TOK*DM*2)
    a("v_and_b32 v4, 15, v1")
    a("v_lshrrev_b32 v5, 4, v1")
    a("v_mul_u32_u24 v6, 1792, v4")
    a("v_lshl_add_u32 v6, v5, 4, v6")
    a("v_mul_u32_u24 v7, 896, v4")
    a("v_lshl_add_u32 v7, v5, 3, v7")
    a("v_lshlrev_b32 v138, 3, v5")
    for i in range(4):
        if i == 3:
            a("s_cmp_ge_u32 s18, 2")
            a(f"s_cbranch_scc1 {pfx}_END")
        a(f"s_add_u32 s30, s18, {4*i}")
        a("s_lshr_b32 s31, s30, 1")
        a("s_and_b32 s32, s30, 1")
        a("s_lshl_b32 s33, s30, 10")
        a("v_add_u32 v139, s33, v2")
        R = 64
        for w in range(4):
            a(f"ds_read_b128 v[{R+4*w}:{R+4*w+3}], v139 offset:{w*14336}")
        a("s_mul_i32 s33, s21, 7")
        a("s_add_u32 s33, s33, s31")
        a("s_lshl_b32 s34, s20, 1")
        a("s_add_u32 s34, s34, s32")
        a(f"s_mul_i32 s35, s34, {16*1792}")
        a("s_lshl_b32 s40, s33, 6")
        a("s_add_u32 s35, s35, s40")
        a(f"s_add_u32 s35, s35, {WS_H}")
        a(f"buffer_load_dwordx4 v[{R+16}:{R+19}], v6, {SRD}, s35 offen")
        a("s_lshl_b32 s40, s33, 5")
        a(f"buffer_load_dwordx2 v[{R+20}:{R+21}], v138, s[12:15], s40 offen")
        a(f"s_mul_i32 s35, s34, {16*896}")
        a("s_add_u32 s35, s35, s40")
        a("s_waitcnt lgkmcnt(0)")
        for r in range(4):
            a(f"v_add_f32 v{R+r}, v{R+r}, v{R+4+r}")
            a(f"v_add_f32 v{R+8+r}, v{R+8+r}, v{R+12+r}")
            a(f"v_add_f32 v{R+r}, v{R+r}, v{R+8+r}")
        a("s_waitcnt vmcnt(0)")
        for k in range(2):
            a(f"v_lshlrev_b32 v{R+22}, 16, v{R+20+k}")
            a(f"v_and_b32 v{R+23}, 0xffff0000, v{R+20+k}")
            a(f"v_add_f32 v{R+2*k}, v{R+2*k}, v{R+22}")
            a(f"v_add_f32 v{R+2*k+1}, v{R+2*k+1}, v{R+23}")
        for r in range(4): a(f"v_add_f32 v{R+r}, v{R+r}, v{R+16+r}")
        a(f"v_cvt_pk_bf16_f32 v{R+24}, v{R}, v{R+1}")
        a(f"v_cvt_pk_bf16_f32 v{R+25}, v{R+2}, v{R+3}")
        a(f"buffer_store_dwordx2 v[{R+24}:{R+25}], v7, s[36:39], s35 offen")
    a(f"{pfx}_END:")
    a("s_waitcnt vmcnt(0)")
    a(end)

def ffn2_kernel(name):
    a = Asm()
    a.raw(f".globl {name}\n.p2align 8\n.type {name},@function\n{name}:")
    std_prologue(a, F2_GRID, "F2_EXIT")
    ffn2_body(a, "F2", 2)
    a("F2_EXIT:")
    a("s_endpgm")
    return a.text()
```

```python
from emit import Asm
from layout import *
SRD = "s[8:11]"

def std_prologue(a, grid, exit_label):
    a(f"s_cmp_ge_u32 s2, {grid}")
    a(f"s_cbranch_scc1 {exit_label}")
    a(f"""
s_load_dwordx2 s[4:5], s[0:1], {KA_WS}
v_lshrrev_b32 v1, 6, v0
s_nop 0
v_readfirstlane_b32 s18, v1
v_and_b32 v1, 63, v0
s_waitcnt lgkmcnt(0)
s_mov_b32 s8, s4
s_and_b32 s9, s5, 0xffff
s_mov_b32 s10, 0x10000000
s_mov_b32 s11, 0x00020000
""")

G1_GRID = 224
def gemm1_body(a, pfx, s_unit, nseg_per=16, seg_stride=4, end="s_endpgm"):
    a(f"""
s_mul_hi_u32 s21, s{s_unit}, {-(-(1<<32)//56)}
s_mul_i32 s22, s21, 56
s_sub_u32 s20, s{s_unit}, s22
v_lshlrev_b32 v2, 4, v1
s_cmp_ge_u32 s20, 28
s_cselect_b32 s23, 1, 0
s_cselect_b32 s24, 28, 0
s_sub_u32 s20, s20, s24
s_lshl_b32 s24, s20, 4
s_lshl_b32 s25, s18, 2
s_add_u32 s24, s24, s25
s_mul_i32 s25, s24, 14336
s_cmp_eq_u32 s23, 0
s_cselect_b32 s26, {WS_AW}, {WS_CW}
s_add_u32 s25, s25, s26
""")
    for q in range(4):
        for kk in range(14):
            r = (q*14+kk)*4
            a(f"buffer_load_dwordx4 a[{r}:{r+3}], v2, {SRD}, s25 offen offset:{(kk%4)*1024}")
            if kk % 4 == 3 or kk == 13:
                a(f"s_add_u32 s25, s25, {4096 if kk != 13 else 2048}")
    a(f"""
s_mul_hi_u32 s26, s24, {-(-(1<<32)//28)}
s_mul_i32 s27, s26, 28
s_sub_u32 s27, s24, s27
s_lshr_b32 s27, s27, 1
s_mul_i32 s26, s26, {128*14336}
s_lshl_b32 s27, s27, 10
s_add_u32 s26, s26, s27
s_add_u32 s26, s26, {WS_TX}
s_lshl_b32 s27, s24, 10
s_add_u32 s27, s27, {WS_DT}
s_cmp_eq_u32 s23, 0
s_cselect_b32 s28, s26, s27
s_mov_b32 s29, {DT_STRIDE}
s_cselect_b32 s29, {2*14336}, s29
s_mul_i32 s30, s21, s29
s_add_u32 s28, s28, s30
s_mul_i32 s29, s29, {seg_stride}
""")
    a(f"""
s_mul_i32 s30, s21, 28672
s_mul_i32 s31, s18, 7168
s_add_u32 s30, s30, s31
s_add_u32 s30, s30, {WS_XNF}
s_mov_b32 s32, s31
""")
    def dma():
        for k in range(7):
            if k % 4 == 0:
                a(f"s_add_u32 m0, s32, {k*1024}")
                a(f"s_add_u32 s33, s30, {k*1024}")
            a(f"buffer_load_dwordx4 v2, {SRD}, s33 offen offset:{(k%4)*1024} lds")
        a(f"s_add_u32 s30, s30, {28672*seg_stride}")
        a(f"s_xor_b32 s32, s32, 32768")
    dma()
    a("v_mov_b32 v3, v2")
    a("s_mov_b32 s34, 0")
    a(f"{pfx}_LOOP:")
    a("s_waitcnt vmcnt(0)")
    a("s_barrier")
    dma()
    ACC = 32; XB = 8
    for r in range(32): a(f"v_mov_b32 v{ACC+r}, 0")
    def rd(kk):
        b = XB + (kk % 2)*8
        a(f"ds_read_b128 v[{b}:{b+3}], v3 offset:{kk*1024}")
        a(f"ds_read_b128 v[{b+4}:{b+7}], v3 offset:{14336 + kk*1024}")
    def body(typ):
        rd(0)
        for kk in range(14):
            if kk + 1 < 14: rd(kk+1)
            a(f"s_waitcnt lgkmcnt({2 if kk + 1 < 14 else 0})")
            b = XB + (kk % 2)*8
            for q in range(4):
                w = f"a[{(q*14+kk)*4}:{(q*14+kk)*4+3}]"
                for tt in range(2):
                    c = ACC + (q*2+tt)*4
                    x = f"v[{b+4*tt}:{b+4*tt+3}]"
                    if typ == 0: a(f"v_mfma_f32_16x16x32_bf16 v[{c}:{c+3}], {w}, {x}, v[{c}:{c+3}]")
                    else: a(f"v_mfma_f32_16x16x32_bf16 v[{c}:{c+3}], {x}, {w}, v[{c}:{c+3}]")
        O = 64
        if typ == 0:
            for tt in range(2):
                for qp in range(2):
                    c1 = ACC + ((2*qp)*2+tt)*4; c2 = ACC + ((2*qp+1)*2+tt)*4; o = O + (tt*2+qp)*4
                    a(f"v_cvt_pk_bf16_f32 v{o}, v{c1}, v{c1+1}")
                    a(f"v_cvt_pk_bf16_f32 v{o+1}, v{c1+2}, v{c1+3}")
                    a(f"v_cvt_pk_bf16_f32 v{o+2}, v{c2}, v{c2+1}")
                    a(f"v_cvt_pk_bf16_f32 v{o+3}, v{c2+2}, v{c2+3}")
                    if tt == 1 and qp == 0: a("s_add_u32 s33, s28, 14336")
                    a(f"buffer_store_dwordx4 v[{o}:{o+3}], v2, {SRD}, s{28 if tt == 0 else 33} offen offset:{qp*1024}")
        else:
            for q in range(4):
                c1 = ACC + (q*2)*4; c2 = ACC + (q*2+1)*4; o = O + q*4
                a(f"v_cvt_pk_bf16_f32 v{o}, v{c1}, v{c1+1}")
                a(f"v_cvt_pk_bf16_f32 v{o+1}, v{c1+2}, v{c1+3}")
                a(f"v_cvt_pk_bf16_f32 v{o+2}, v{c2}, v{c2+1}")
                a(f"v_cvt_pk_bf16_f32 v{o+3}, v{c2+2}, v{c2+3}")
                a(f"buffer_store_dwordx4 v[{o}:{o+3}], v2, {SRD}, s28 offen offset:{q*1024}")
    a("s_cmp_eq_u32 s23, 0")
    a(f"s_cbranch_scc0 {pfx}_TC")
    body(0)
    a(f"s_branch {pfx}_TE")
    a(f"{pfx}_TC:")
    body(1)
    a(f"{pfx}_TE:")
    a("v_xor_b32 v3, 32768, v3")
    a("s_add_u32 s28, s28, s29")
    a("s_add_u32 s34, s34, 1")
    a(f"s_cmp_lt_u32 s34, {nseg_per}")
    a(f"s_cbranch_scc1 {pfx}_LOOP")
    a("s_waitcnt vmcnt(0)")
    a(end)

def gemm1_kernel(name):
    a = Asm()
    a.raw(f".globl {name}\n.p2align 8\n.type {name},@function\n{name}:")
    std_prologue(a, G1_GRID, "G1_EXIT")
    gemm1_body(a, "G1", 2)
    a("G1_EXIT:")
    a("s_endpgm")
    return a.text()
```

```python
from emit import Asm
from layout import *
SRD = "s[8:11]"

def mk_srd(a, base, ptr_lo, nbytes):
    a(f"s_mov_b32 s{base}, s{ptr_lo}")
    a(f"s_and_b32 s{base+1}, s{ptr_lo+1}, 0xffff")
    a(f"s_mov_b32 s{base+2}, {nbytes}")
    a(f"s_mov_b32 s{base+3}, 0x00020000")

def wave_sum(a, regs, tmp):
    for mod in ("quad_perm:[1,0,3,2]", "quad_perm:[2,3,0,1]", "row_half_mirror", "row_mirror"):
        for r in regs: a(f"v_add_f32_dpp v{r}, v{r}, v{r} {mod} row_mask:0xf bank_mask:0xf")
    for sw in ("v_permlane16_swap_b32", "v_permlane32_swap_b32"):
        for r, t in zip(regs, tmp): a(f"v_mov_b32 v{t}, v{r}")
        for r, t in zip(regs, tmp): a(f"{sw} v{r}, v{t}")
        for r, t in zip(regs, tmp): a(f"v_add_f32 v{r}, v{r}, v{t}")

N_LN = 64; N_W = 256; N_F1 = 28; N_F2 = 14; N_S = 16
B_W = 0; B_LN = B_W + N_W; B_F1 = B_LN + N_LN; B_F2 = B_F1 + N_F1; B_S = B_F2 + N_F2; PREP_GRID = B_S + N_S

def task_ln(a):
    RS = 912
    a("PREP_LN:")
    a(f"s_sub_u32 s20, s2, {B_LN}")
    a(f"s_load_dwordx2 s[16:17], s[0:1], {KA_X}")
    a("s_waitcnt lgkmcnt(0)")
    mk_srd(a, 12, 16, S_TOK*DM*2)
    a(f"""
s_lshl_b32 s21, s20, 5
s_lshl_b32 s22, s13x, 3
""".replace("s13x", "s18"))
    a("s_add_u32 s21, s21, s22")
    a("s_mul_i32 s21, s21, 896")
    a("v_lshlrev_b32 v2, 4, v1")
    a("v_mov_b32 v3, 0x7ffffff0")
    a("v_cmp_gt_u32 vcc, 56, v1")
    a("v_cndmask_b32 v3, v3, v2, vcc")
    for r in range(8):
        a(f"buffer_load_dwordx4 v[{16+4*r}:{19+4*r}], v3, s[12:15], s21 offen offset:{r*896 if r*896 < 4096 else 0}" if r*896 < 4096 else
          f"buffer_load_dwordx4 v[{16+4*r}:{19+4*r}], v3, s[12:15], s23 offen offset:{r*896-3584}")
        if r == 3: a("s_add_u32 s23, s21, 3584")
    F = 64
    for r in range(8):
        a(f"s_waitcnt vmcnt({7-r})")
        for k in range(4):
            a(f"v_lshlrev_b32 v{F+8*r+2*k}, 16, v{16+4*r+k}")
            a(f"v_and_b32 v{F+8*r+2*k+1}, 0xffff0000, v{16+4*r+k}")
    S = 16
    for r in range(8):
        f = F+8*r
        a(f"v_add_f32 v{S+r}, v{f}, v{f+1}")
        for k in range(2, 8): a(f"v_add_f32 v{S+r}, v{S+r}, v{f+k}")
    wave_sum(a, [S+r for r in range(8)], [S+8+r for r in range(8)])
    a("s_mov_b32 s24, 0x3b124925")
    for r in range(8): a(f"v_mul_f32 v{S+r}, s24, v{S+r}")
    for r in range(8):
        f = F+8*r
        for k in range(8): a(f"v_sub_f32 v{f+k}, v{f+k}, v{S+r}")
    for r in range(8):
        f = F+8*r
        a(f"v_mul_f32 v{S+r}, v{f}, v{f}")
        for k in range(1, 8): a(f"v_fmac_f32 v{S+r}, v{f+k}, v{f+k}")
    a("v_cmp_gt_u32 vcc, 56, v1")
    for r in range(8): a(f"v_cndmask_b32 v{S+r}, 0, v{S+r}, vcc")
    wave_sum(a, [S+r for r in range(8)], [S+8+r for r in range(8)])
    a("v_mov_b32 v32, 0x3727c5ac")
    for r in range(8): a(f"v_fma_f32 v{S+r}, v{S+r}, s24, v32")
    for r in range(8): a(f"v_rsq_f32 v{S+r}, v{S+r}")
    for r in range(8):
        f = F+8*r
        for k in range(8): a(f"v_mul_f32 v{f+k}, v{f+k}, v{S+r}")
    a(f"s_mul_i32 s22, s18, {8*RS}")
    a("v_add_u32 v4, s22, v2")
    a("s_mov_b64 s[26:27], exec")
    a("s_mov_b32 exec_hi, 0x00ffffff")
    for r in range(8):
        f = F+8*r
        for k in range(4): a(f"v_cvt_pk_bf16_f32 v{32+4*(r%2)+k}, v{f+2*k}, v{f+2*k+1}")
        a(f"ds_write_b128 v4, v[{32+4*(r%2)}:{35+4*(r%2)}] offset:{r*RS}")
    a("s_mov_b64 exec, s[26:27]")
    a("s_waitcnt lgkmcnt(0)")
    a("s_barrier")
    a("v_and_b32 v5, 15, v1")
    a("v_lshrrev_b32 v6, 4, v1")
    a(f"v_mul_u32_u24 v7, {RS}, v5")
    a("v_lshrrev_b32 v8, 1, v6")
    a("v_lshlrev_b32 v8, 5, v8")
    a("v_and_b32 v9, 1, v6")
    a("v_lshl_add_u32 v8, v9, 3, v8")
    a("v_add_u32 v8, v8, v7")
    a("v_lshl_add_u32 v10, v6, 3, v7")
    a("s_mul_i32 s22, s18, 7")
    a("s_mul_i32 s23, s20, 28672")
    a(f"s_add_u32 s24, s23, {WS_XNF}")
    a(f"s_add_u32 s25, s23, {WS_XK2}")
    for i in range(7):
        a(f"s_add_u32 s28, s22, {i}")
        a("s_cmp_ge_u32 s28, 14")
        a("s_cselect_b32 s29, 14, 0")
        a("s_sub_u32 s30, s28, s29")
        a(f"s_cselect_b32 s29, {16*RS}, 0")
        a("s_cmp_ge_u32 s28, 14")
        a(f"s_cselect_b32 s29, {16*RS}, 0")
        a("s_lshl_b32 s31, s30, 6")
        a("s_add_u32 s29, s29, s31")
        a("v_add_u32 v11, s29, v8")
        a("v_add_u32 v12, s29, v10")
        b = 16 + 8*(i % 2)
        a(f"ds_read2_b32 v[{b}:{b+1}], v11 offset0:0 offset1:4")
        a(f"ds_read2_b32 v[{b+2}:{b+3}], v11 offset0:1 offset1:5")
        a(f"ds_read_b64 v[{b+4}:{b+5}], v12")
        a(f"ds_read_b64 v[{b+6}:{b+7}], v12 offset:32")
        a("s_lshl_b32 s31, s28, 10")
        a("s_add_u32 s29, s24, s31")
        a("s_add_u32 s30, s25, s31")
        a("s_waitcnt lgkmcnt(0)")
        a(f"buffer_store_dwordx4 v[{b}:{b+3}], v2, {SRD}, s29 offen")
        a(f"buffer_store_dwordx4 v[{b+4}:{b+7}], v2, {SRD}, s30 offen")
    a("s_mul_i32 s22, s18, 224")
    a("s_lshl_b32 s23, s20, 15")
    a("s_lshl_b32 s24, s18, 13")
    a("s_add_u32 s23, s23, s24")
    a(f"s_add_u32 s23, s23, {WS_XK}")
    a("v_add_u32 v12, s22, v10")
    for kt in range(2):
        for p in range(4):
            b = 16 + 4*((kt*4+p) % 4)
            a(f"ds_read_b64 v[{b}:{b+1}], v12 offset:{kt*16*RS + p*64}")
            a(f"ds_read_b64 v[{b+2}:{b+3}], v12 offset:{kt*16*RS + p*64 + 32}")
            a("s_waitcnt lgkmcnt(0)")
            o = (kt*4+p)*1024
            if o == 4096: a("s_add_u32 s23, s23, 4096")
            a(f"buffer_store_dwordx4 v[{b}:{b+3}], v2, {SRD}, s23 offen offset:{o % 4096}")
    a("s_endpgm")

def task_w(a):
    a("PREP_W:")
    a(f"""
s_sub_u32 s20, s2, {B_W}
s_lshr_b32 s21, s20, 7
s_lshr_b32 s22, s20, 3
s_and_b32 s22, s22, 15
s_lshr_b32 s23, s20, 1
s_and_b32 s23, s23, 3
s_and_b32 s24, s20, 1
s_load_dwordx2 s[16:17], s[0:1], {KA_WQ}
s_load_dwordx2 s[28:29], s[0:1], {KA_WK}
s_load_dwordx2 s[30:31], s[0:1], {KA_WV}
s_load_dwordx2 s[32:33], s[0:1], {KA_WO}
s_waitcnt lgkmcnt(0)
s_cmp_eq_u32 s21, 0
s_cselect_b32 s16, s16, s30
s_cselect_b32 s17, s17, s31
s_cselect_b32 s28, s28, s32
s_cselect_b32 s29, s29, s33
""")
    WB = DM*H*DH*2
    mk_srd(a, 12, 16, WB)
    mk_srd(a, 36, 28, WB)
    a("v_and_b32 v5, 15, v1")
    a("v_lshrrev_b32 v6, 4, v1")
    a("v_lshlrev_b32 v2, 4, v1")
    BR = 64
    a("s_cmp_eq_u32 s21, 0")
    a("s_cbranch_scc0 PW_BC")
    a("v_lshlrev_b32 v7, 13, v5")
    a("v_lshl_add_u32 v7, v6, 4, v7")
    a(f"s_mul_i32 s25, s23, {112*8192}")
    a("s_lshl_b32 s26, s22, 9")
    a("s_add_u32 s25, s25, s26")
    for t in range(7):
        for ks in range(8):
            r = (t*8+ks)*4
            a(f"buffer_load_dwordx4 a[{r}:{r+3}], v7, s[36:39], s25 offen offset:{ks*64}")
        a(f"s_add_u32 s25, s25, {16*8192}")
    a("s_branch PW_BDONE")
    a("PW_BC:")
    a("s_lshl_b32 s25, s18, 6")
    a("v_add_u32 v7, s25, v1")
    a("v_mul_u32_u24 v8, 896, v7")
    a("v_mul_u32_u24 v9, 224, v7")
    a(f"s_mul_i32 s25, s22, {256*896}")
    a("s_mul_i32 s26, s23, 224")
    a("s_add_u32 s25, s25, s26")
    for k in range(14):
        a(f"buffer_load_dwordx4 v[{16+4*k}:{19+4*k}], v8, s[36:39], s25 offen offset:{k*16}")
    for k in range(14):
        a(f"s_waitcnt vmcnt({13-k})")
        a(f"ds_write_b128 v9, v[{16+4*k}:{19+4*k}] offset:{k*16}")
    a("s_waitcnt lgkmcnt(0)")
    a("s_barrier")
    a("v_lshrrev_b32 v7, 2, v5")
    a("v_lshl_add_u32 v7, v6, 3, v7")
    a("v_mul_u32_u24 v7, 224, v7")
    a("v_and_b32 v8, 3, v1")
    a("v_lshl_add_u32 v7, v8, 3, v7")
    for t in range(7):
        for ks in range(8):
            b = 16 + 4*(ks % 8)
            a(f"ds_read_b64_tr_b16 v[{b}:{b+1}], v7 offset:{ks*32*224 + t*32}")
            a(f"ds_read_b64_tr_b16 v[{b+2}:{b+3}], v7 offset:{ks*32*224 + 4*224 + t*32}")
        a("s_waitcnt lgkmcnt(0)")
        for ks in range(8):
            b = 16 + 4*ks; r = (t*8+ks)*4
            for k in range(4): a(f"v_accvgpr_write_b32 a{r+k}, v{b+k}")
    a("PW_BDONE:")
    a("""
v_lshrrev_b32 v7, 3, v5
v_lshlrev_b32 v7, 4, v7
v_lshrrev_b32 v8, 2, v5
v_and_b32 v8, 1, v8
v_lshl_add_u32 v7, v8, 2, v7
v_and_b32 v8, 1, v5
v_add_u32 v7, v7, v8
v_lshrrev_b32 v8, 1, v5
v_and_b32 v8, 1, v8
v_lshl_add_u32 v7, v8, 3, v7
v_lshlrev_b32 v7, 13, v7
v_lshl_add_u32 v7, v6, 4, v7
""")
    a("s_mul_i32 s25, s24, 7")
    a("s_add_u32 s25, s25, s18")
    a("s_mov_b32 s34, 0")
    a("PW_BLK:")
    a("s_lshl_b32 s26, s25, 18")
    a("s_lshl_b32 s27, s22, 9")
    a("s_add_u32 s26, s26, s27")
    a(f"s_add_u32 s27, s26, {2*8192}")
    AR = 16
    for ks in range(8):
        a(f"buffer_load_dwordx4 v[{AR+4*ks}:{AR+4*ks+3}], v7, s[12:15], s26 offen offset:{ks*64}")
    for ks in range(8):
        a(f"buffer_load_dwordx4 v[{AR+32+4*ks}:{AR+32+4*ks+3}], v7, s[12:15], s27 offen offset:{ks*64}")
    AC = 80
    for r in range(56): a(f"v_mov_b32 v{AC+r}, 0")
    a("s_waitcnt vmcnt(0)")
    for ks in range(8):
        for tl in range(2):
            for t in range(7):
                c = AC + (tl*7+t)*4; br = (t*8+ks)*4; ar = AR + tl*32 + 4*ks
                a(f"v_mfma_f32_16x16x32_bf16 v[{c}:{c+3}], v[{ar}:{ar+3}], a[{br}:{br+3}], v[{c}:{c+3}]")
    import struct
    sc = struct.unpack('<I', struct.pack('<f', LOG2E/16))[0]
    a(f"s_mov_b32 s27, {sc}")
    a("s_cmp_eq_u32 s21, 0")
    a("s_cselect_b32 s27, s27, 1.0")
    for r in range(56): a(f"v_mul_f32 v{AC+r}, s27, v{AC+r}")
    for t in range(7):
        a("s_cmp_eq_u32 s21, 0")
        a("s_cbranch_scc0 PW_DC%d" % t)
        a("s_lshl_b32 s26, s22, 2")
        a("s_add_u32 s26, s26, s23")
        a("s_mul_i32 s26, s26, 7")
        a(f"s_add_u32 s26, s26, {t}")
        a("s_mul_i32 s26, s26, 14336")
        a(f"s_add_u32 s26, s26, {WS_AW}")
        a("s_branch PW_DD%d" % t)
        a("PW_DC%d:" % t)
        a("s_mul_i32 s26, s23, 7")
        a(f"s_add_u32 s26, s26, {t}")
        a("s_lshr_b32 s35, s26, 1")
        a("s_lshl_b32 s35, s35, 2")
        a("s_lshr_b32 s40, s22, 2")
        a("s_add_u32 s35, s35, s40")
        a("s_lshl_b32 s35, s35, 3")
        a("s_and_b32 s40, s22, 3")
        a("s_lshl_b32 s40, s40, 1")
        a("s_add_u32 s35, s35, s40")
        a("s_and_b32 s40, s26, 1")
        a("s_add_u32 s35, s35, s40")
        a("s_mul_i32 s26, s35, 14336")
        a(f"s_add_u32 s26, s26, {WS_CW}")
        a("PW_DD%d:" % t)
        a("s_lshl_b32 s35, s25, 10")
        a("s_add_u32 s26, s26, s35")
        c1 = AC + t*4; c2 = AC + (7+t)*4; o = 16 + 4*(t % 2)
        a(f"v_cvt_pk_bf16_f32 v{o}, v{c1}, v{c1+1}")
        a(f"v_cvt_pk_bf16_f32 v{o+1}, v{c1+2}, v{c1+3}")
        a(f"v_cvt_pk_bf16_f32 v{o+2}, v{c2}, v{c2+1}")
        a(f"v_cvt_pk_bf16_f32 v{o+3}, v{c2+2}, v{c2+3}")
        a(f"buffer_store_dwordx4 v[{o}:{o+3}], v2, {SRD}, s26 offen")
    a("s_add_u32 s25, s25, 4")
    a("s_add_u32 s34, s34, 1")
    a("s_cmp_ge_u32 s34, 2")
    a("s_cbranch_scc1 PW_END")
    a("s_cmp_lt_u32 s18, 3")
    a("s_cbranch_scc1 PW_BLK")
    a("PW_END:")
    a("s_endpgm")

def task_f1(a):
    a("PREP_F1:")
    a(f"s_sub_u32 s20, s2, {B_F1}")
    a(f"s_load_dwordx2 s[16:17], s[0:1], {KA_W1}")
    a("s_waitcnt lgkmcnt(0)")
    mk_srd(a, 12, 16, DM*FF*2)
    RS = 144
    a("v_lshrrev_b32 v5, 3, v0")
    a("v_and_b32 v6, 7, v0")
    a(f"v_mul_u32_u24 v7, {FF*2}, v5")
    a("v_lshl_add_u32 v7, v6, 4, v7")
    a(f"v_mul_u32_u24 v8, {RS}, v5")
    a("v_lshl_add_u32 v8, v6, 4, v8")
    a("s_lshl_b32 s21, s20, 7")
    for k in range(14):
        a(f"buffer_load_dwordx4 v[{16+4*k}:{19+4*k}], v7, s[12:15], s21 offen")
        a(f"s_add_u32 s21, s21, {32*FF*2}")
    for k in range(14):
        a(f"s_waitcnt vmcnt({13-k})")
        a(f"ds_write_b128 v8, v[{16+4*k}:{19+4*k}] offset:{k*32*RS}")
    a("s_waitcnt lgkmcnt(0)")
    a("s_barrier")
    a("v_and_b32 v5, 15, v1")
    a("v_lshrrev_b32 v6, 4, v1")
    a("v_lshrrev_b32 v7, 2, v5")
    a("v_lshl_add_u32 v7, v6, 2, v7")
    a(f"v_mul_u32_u24 v7, {RS}, v7")
    a("v_and_b32 v8, 3, v1")
    a("v_lshl_add_u32 v7, v8, 3, v7")
    a("s_lshl_b32 s21, s18, 5")
    a("v_add_u32 v7, s21, v7")
    a("v_lshlrev_b32 v2, 4, v1")
    a("s_lshl_b32 s22, s20, 2")
    a("s_add_u32 s22, s22, s18")
    a("s_mul_i32 s22, s22, 14336")
    a(f"s_add_u32 s22, s22, {WS_W1F}")
    for kk in range(14):
        b = 16 + 4*(kk % 4)
        a(f"ds_read_b64_tr_b16 v[{b}:{b+1}], v7 offset:{kk*32*RS}")
        a(f"ds_read_b64_tr_b16 v[{b+2}:{b+3}], v7 offset:{kk*32*RS + 16*RS}")
        a("s_waitcnt lgkmcnt(0)")
        if kk and kk % 4 == 0: a("s_add_u32 s22, s22, 4096")
        a(f"buffer_store_dwordx4 v[{b}:{b+3}], v2, {SRD}, s22 offen offset:{(kk%4)*1024}")
    a("s_endpgm")

def task_f2(a):
    a("PREP_F2:")
    a(f"s_sub_u32 s20, s2, {B_F2}")
    a(f"s_load_dwordx2 s[16:17], s[0:1], {KA_W2}")
    a("s_waitcnt lgkmcnt(0)")
    mk_srd(a, 12, 16, FF*DM*2)
    RS = 912
    a("v_lshlrev_b32 v2, 4, v1")
    a("v_mov_b32 v3, 0x7ffffff0")
    a("v_cmp_gt_u32 vcc, 56, v1")
    a("v_cndmask_b32 v3, v3, v2, vcc")
    a("s_lshl_b32 s21, s20, 7")
    a("s_lshl_b32 s22, s18, 5")
    a("s_add_u32 s21, s21, s22")
    a("s_mul_i32 s21, s21, 896")
    a(f"s_mul_i32 s22, s18, {32*RS}")
    a("v_add_u32 v4, s22, v2")
    a("s_mov_b64 s[26:27], exec")
    for half in range(2):
        for k in range(16):
            a(f"buffer_load_dwordx4 v[{16+4*k}:{19+4*k}], v3, s[12:15], s21 offen")
            a("s_add_u32 s21, s21, 896")
        a("s_mov_b32 exec_hi, 0x00ffffff")
        for k in range(16):
            a(f"s_waitcnt vmcnt({15-k})")
            a(f"ds_write_b128 v4, v[{16+4*k}:{19+4*k}] offset:{(half*16+k)*RS}")
        a("s_mov_b64 exec, s[26:27]")
    a("s_waitcnt lgkmcnt(0)")
    a("s_barrier")
    a("v_and_b32 v5, 15, v1")
    a("v_lshrrev_b32 v6, 4, v1")
    a("v_lshrrev_b32 v7, 2, v5")
    a("v_lshl_add_u32 v7, v6, 2, v7")
    a(f"v_mul_u32_u24 v7, {RS}, v7")
    a("v_and_b32 v8, 3, v1")
    a("v_lshl_add_u32 v7, v8, 3, v7")
    a("v_add_u32 v7, s22, v7")
    a("s_lshl_b32 s23, s20, 2")
    a("s_add_u32 s23, s23, s18")
    a("s_lshl_b32 s23, s23, 10")
    a(f"s_add_u32 s23, s23, {WS_W2F}")
    for ct in range(28):
        b = 16 + 4*(ct % 4)
        a(f"ds_read_b64_tr_b16 v[{b}:{b+1}], v7 offset:{ct*32}")
        a(f"ds_read_b64_tr_b16 v[{b+2}:{b+3}], v7 offset:{ct*32 + 16*RS}")
        a("s_waitcnt lgkmcnt(0)")
        a(f"buffer_store_dwordx4 v[{b}:{b+3}], v2, {SRD}, s23 offen")
        a(f"s_add_u32 s23, s23, {56*1024}")
    a("s_endpgm")

def task_s(a):
    a("PREP_S:")
    a(f"s_sub_u32 s20, s2, {B_S}")
    a("v_lshlrev_b32 v2, 4, v0")
    for r in range(4): a(f"v_mov_b32 v{16+r}, -1")
    start = WS_MEMS + MEMS_STRIDE; end = WS_PBUF + 64*PBUF_STRIDE
    n = (end - start) // 4096
    per = -(-n // N_S)
    a(f"s_mul_i32 s21, s20, {per*4096}")
    a(f"s_add_u32 s21, s21, {start}")
    a(f"s_mov_b32 s22, {per}")
    a("PS_LOOP:")
    a(f"s_cmp_ge_u32 s21, {end}")
    a("s_cbranch_scc1 PS_DONE")
    a(f"buffer_store_dwordx4 v[16:19], v2, {SRD}, s21 offen")
    a("s_add_u32 s21, s21, 4096")
    a("s_sub_u32 s22, s22, 1")
    a("s_cmp_lg_u32 s22, 0")
    a("s_cbranch_scc1 PS_LOOP")
    a("PS_DONE:")
    a("s_cmp_lg_u32 s20, 0")
    a("s_cbranch_scc1 PS_END")
    a(f"s_load_dwordx2 s[16:17], s[0:1], {KA_MEM0}")
    a("s_waitcnt lgkmcnt(0)")
    mk_srd(a, 12, 16, M*DM*2)
    for k in range(2):
        a(f"v_add_u32 v5, {256*k}, v0")
        a("v_lshrrev_b32 v6, 3, v5")
        a("v_and_b32 v7, 7, v5")
        a("v_mul_u32_u24 v7, 896, v7")
        a("v_lshl_add_u32 v7, v6, 4, v7")
        a("v_mov_b32 v8, 0x7ffffff0")
        a("v_cmp_gt_u32 vcc, 448, v5")
        a("v_cndmask_b32 v7, v8, v7, vcc")
        a("v_lshlrev_b32 v9, 4, v5")
        a("v_cndmask_b32 v9, v8, v9, vcc")
        a("buffer_load_dwordx4 v[20:23], v7, s[12:15], 0 offen")
        a("s_waitcnt vmcnt(0)")
        a(f"s_mov_b32 s21, {WS_MEMS}")
        a(f"buffer_store_dwordx4 v[20:23], v9, {SRD}, s21 offen")
    a("PS_END:")
    a("s_endpgm")

def prep_kernel(name):
    a = Asm()
    a.raw(f".globl {name}\n.p2align 8\n.type {name},@function\n{name}:")
    a(f"s_cmp_ge_u32 s2, {PREP_GRID}")
    a("s_cbranch_scc1 PREP_EXIT")
    a(f"""
s_load_dwordx2 s[4:5], s[0:1], {KA_WS}
v_lshrrev_b32 v1, 6, v0
s_nop 0
v_readfirstlane_b32 s18, v1
v_and_b32 v1, 63, v0
s_waitcnt lgkmcnt(0)
s_mov_b32 s8, s4
s_and_b32 s9, s5, 0xffff
s_mov_b32 s10, 0x10000000
s_mov_b32 s11, 0x00020000
""")
    a(f"s_cmp_ge_u32 s2, {B_S}")
    a("s_cbranch_scc1 PREP_S")
    a(f"s_cmp_ge_u32 s2, {B_F2}")
    a("s_cbranch_scc1 PREP_F2")
    a(f"s_cmp_ge_u32 s2, {B_F1}")
    a("s_cbranch_scc1 PREP_F1")
    a(f"s_cmp_ge_u32 s2, {B_LN}")
    a("s_cbranch_scc1 PREP_LN")
    task_w(a)
    task_ln(a)
    task_f1(a)
    task_f2(a)
    task_s(a)
    a("PREP_EXIT:")
    a("s_endpgm")
    return a.text()
```

```python
S_TOK=2048; DM=448; H=16; DH=256; M=8; SEG=32; NSEG=64; FF=1792
WS_AW   = 0x0000000
WS_CW   = 0x0680000
WS_XK   = 0x0D00000
WS_MEMS = 0x0F80000
WS_PBUF = 0x1000000
WS_DT   = 0x1100000
WS_UF   = 0x2E00000
WS_XNF  = 0x3600000
WS_XK2  = 0x3800000
WS_TX   = 0x3A00000
WS_H    = 0x5700000
WS_HNF  = 0x5B00000
WS_W1F  = 0x5D00000
WS_W2F  = 0x5F00000
WS_ACT  = 0x6100000
WS_TRACE= 0x6900000
WS_END  = 0x7000000
MEMS_STRIDE=8192; PBUF_STRIDE=10240; XK_STRIDE=32768; DT_STRIDE=14*32768; UF_STRIDE=14*8192
NA=16; NC=14; NEED=NA+NC
KA_X=0; KA_MEM0=8; KA_WQ=16; KA_WK=24; KA_WV=32; KA_WO=40; KA_SEG=48; KA_BX=56; KA_W1=64; KA_B1=72; KA_W2=80; KA_B2=88; KA_OUT=96; KA_DBG=104; KA_WS=112
def dmap(k):
    return 16*(k//16) + 8*((k%4)//2) + 2*((k%16)//4) + (k%2)
LOG2E = 1.4426950408889634
```

```python
import sys
sys.path.insert(0, 'gen')
from layout import *
import chain, kprep, kgemm1, kfin
KD = """.amdhsa_kernel {name}
  .amdhsa_next_free_vgpr {vgpr}
  .amdhsa_next_free_sgpr 96
  .amdhsa_accum_offset {acc}
  .amdhsa_group_segment_fixed_size 0
  .amdhsa_kernarg_size 120
  .amdhsa_user_sgpr_count 2
  .amdhsa_user_sgpr_kernarg_segment_ptr 1
  .amdhsa_system_sgpr_workgroup_id_x 1
.end_amdhsa_kernel
"""
def assemble(kernels, path, header=""):
    src = header
    for (name, grid, lds, vgpr, acc, text) in kernels:
        src += f"; @launch kernel={name} grid=({grid},1,1) block=(256,1,1) lds={lds}\n"
    src += '.amdgcn_target "amdgcn-amd-amdhsa--gfx950"\n.text\n'
    seen = set()
    for (name, grid, lds, vgpr, acc, text) in kernels:
        if name in seen: continue
        seen.add(name); src += text
    src += '.section .rodata,"a"\n'
    seen = set()
    for (name, grid, lds, vgpr, acc, text) in kernels:
        if name in seen: continue
        seen.add(name); src += ".p2align 6\n" + KD.format(name=name, vgpr=vgpr, acc=acc)
    open(path, "w").write(src)
    return src
if __name__ == "__main__":
    which = sys.argv[1]
    if which == "prep":
        assemble([("prep_kernel", kprep.PREP_GRID, 122880, 512, 256, kprep.prep_kernel("prep_kernel"))], "prep.s")
    if which == "gemm1":
        assemble([("prep_kernel", kprep.PREP_GRID, 122880, 512, 256, kprep.prep_kernel("prep_kernel")),
                  ("gemm1_kernel", kgemm1.G1_GRID, 65536, 512, 256, kgemm1.gemm1_kernel("gemm1_kernel"))], "gemm1.s")
    if which == "full":
        P = {'pfnodt':1}
        for kv in sys.argv[3:]:
            k, v = kv.split('='); P[k] = int(v)
        name = "sequential_preLN__memory_aug_recurrent_mem_tr__dense_activation_squared_relu__prompt"
        hdr = open(f"cdna_kernels/{name}.s.ref").read().split("; Override launch geometry")[0]
        ks = [("prep_kernel", kprep.PREP_GRID, 122880, 512, 256, kprep.prep_kernel("prep_kernel")),
              ("gemm1_kernel", kgemm1.G1_GRID, 65536, 512, 256, kgemm1.gemm1_kernel("gemm1_kernel")),
              ("chain_kernel", 256, 163840, 512, 256, chain.chain_kernel("chain_kernel", P=P)),
              ("att_kernel", kfin.ATT_GRID, 65536, 512, 256, kfin.att_kernel("att_kernel")),
              ("ffn1_kernel", kfin.F1_GRID, 65536, 512, 256, kfin.ffn1_kernel("ffn1_kernel")),
              ("ffn2_kernel", kfin.F2_GRID, 65536, 256, 256, kfin.ffn2_kernel("ffn2_kernel"))]
        src = assemble(ks, sys.argv[2], header=hdr)
        print("bytes", len(src), "lines", src.count("\n"))
```
